```python
import torch

def _softmax(x, axis=-1):
    return torch.softmax(x, dim=axis)
def _gelu(x):
    return torch.nn.functional.gelu(x, approximate="tanh")
def _silu(x):
    return torch.nn.functional.silu(x)
def _sigmoid(x):
    return torch.sigmoid(x)
def _layernorm(x, axis=-1, eps=1e-5):
    m = x.mean(dim=axis, keepdim=True)
    v = x.var(dim=axis, keepdim=True, unbiased=False)
    return (x - m) / torch.sqrt(v + eps)
def _scatter_add(tgt, idx, src, axis=0):
    return tgt.clone().index_add_(axis, idx, src)
def _segment_sum(src, seg, n):
    out = torch.zeros((n,) + src.shape[1:], dtype=src.dtype)
    return out.index_add_(0, seg, src)
def _pad(x, pw):
    flat = tuple(v for pair in reversed(pw) for v in pair)
    return torch.nn.functional.pad(x, flat)

kernel_name = 'concat_heads__gqa_block_cached__gqa_block_cached__near_ridge'

def setup_inputs():

    _w = (lambda a: (lambda t: t.to(torch.bfloat16) if t.is_floating_point() else t)(torch.as_tensor(a)))
    def _A_setup():
        B, Sq, D = 8, 80, 576
        Hq, Hkv, Sk, Dh = 32, 16, 1024, 128
        assert Hq % Hkv == 0, (Hq, Hkv)
        return {
            "x": _w((lambda *s: torch.randn(*s, dtype=torch.bfloat16) * 0.8)(B, Sq, D)),
            "k_cache": _w((lambda *s: torch.randn(*s, dtype=torch.bfloat16) * 0.8)(B, Hkv, Sk, Dh)),
            "v_cache": _w((lambda *s: torch.randn(*s, dtype=torch.bfloat16) * 0.05)(B, Hkv, Sk, Dh)),
            "wq": _w((lambda *s: torch.randn(*s, dtype=torch.bfloat16) * 0.8)(D, Hq * Dh) * (D ** -0.5)),
            "wo": _w((lambda *s: torch.randn(*s, dtype=torch.bfloat16) * 0.05)(Hq * Dh, D) * ((Hq * Dh) ** -0.5)),
        }
    _A_in = _A_setup()

    def _B_setup():
        B, Sq, D = 8, 80, 576
        Hq, Hkv, Sk, Dh = 32, 16, 1024, 128
        assert Hq % Hkv == 0, (Hq, Hkv)
        return {
            "x": _w((lambda *s: torch.randn(*s, dtype=torch.bfloat16) * 0.8)(B, Sq, D)),
            "k_cache": _w((lambda *s: torch.randn(*s, dtype=torch.bfloat16) * 0.8)(B, Hkv, Sk, Dh)),
            "v_cache": _w((lambda *s: torch.randn(*s, dtype=torch.bfloat16) * 0.05)(B, Hkv, Sk, Dh)),
            "wq": _w((lambda *s: torch.randn(*s, dtype=torch.bfloat16) * 0.8)(D, Hq * Dh) * (D ** -0.5)),
            "wo": _w((lambda *s: torch.randn(*s, dtype=torch.bfloat16) * 0.05)(Hq * Dh, D) * ((Hq * Dh) ** -0.5)),
        }
    _B_in = _B_setup()

    return {
        "A_x": _A_in["x"],
        "A_k_cache": _A_in["k_cache"],
        "A_v_cache": _A_in["v_cache"],
        "A_wq": _A_in["wq"],
        "A_wo": _A_in["wo"],
        "B_x": _B_in["x"],
        "B_k_cache": _B_in["k_cache"],
        "B_v_cache": _B_in["v_cache"],
        "B_wq": _B_in["wq"],
        "B_wo": _B_in["wo"],
    }

def reference(A_x, A_k_cache, A_v_cache, A_wq, A_wo, B_x, B_k_cache, B_v_cache, B_wq, B_wo):
    def _A_ref(x, k_cache, v_cache, wq, wo):
        B, Sq, D = x.shape
        Hq, Dh = 32, 128
        Hkv = k_cache.shape[1]
        rep = Hq // Hkv
        q = (lambda x, *d: x.permute(*d))((x @ wq).reshape(B, Sq, Hq, Dh), 0, 2, 1, 3)
        k = (lambda x, n, axis: torch.repeat_interleave(x, n, dim=axis))(k_cache, rep, axis=1)
        v = (lambda x, n, axis: torch.repeat_interleave(x, n, dim=axis))(v_cache, rep, axis=1)
        scores = torch.einsum("bhqd,bhkd->bhqk", q, k) * (Dh ** -0.5)
        p = _softmax(scores, axis=-1)
        o = torch.einsum("bhqk,bhkd->bhqd", p, v)
        return (lambda x, *d: x.permute(*d))(o, 0, 2, 1, 3).reshape(B, Sq, Hq * Dh) @ wo

    def _B_ref(x, k_cache, v_cache, wq, wo):
        B, Sq, D = x.shape
        Hq, Dh = 32, 128
        Hkv = k_cache.shape[1]
        rep = Hq // Hkv
        q = (lambda x, *d: x.permute(*d))((x @ wq).reshape(B, Sq, Hq, Dh), 0, 2, 1, 3)
        k = (lambda x, n, axis: torch.repeat_interleave(x, n, dim=axis))(k_cache, rep, axis=1)
        v = (lambda x, n, axis: torch.repeat_interleave(x, n, dim=axis))(v_cache, rep, axis=1)
        scores = torch.einsum("bhqd,bhkd->bhqk", q, k) * (Dh ** -0.5)
        p = _softmax(scores, axis=-1)
        o = torch.einsum("bhqk,bhkd->bhqd", p, v)
        return (lambda x, *d: x.permute(*d))(o, 0, 2, 1, 3).reshape(B, Sq, Hq * Dh) @ wo

    a = _A_ref(A_x, A_k_cache, A_v_cache, A_wq, A_wo)
    b = _B_ref(B_x, B_k_cache, B_v_cache, B_wq, B_wo)
    return torch.concatenate([a, b], axis=-1)
```

```python
NAME = "concat_heads__gqa_block_cached__gqa_block_cached__near_ridge"

HEADER_COMMENT = open("cdna_kernels/%s.s.ref" % NAME).read().split("; Override launch")[0]

class Asm:
    def __init__(self):
        self.lines = []
        self.nlabel = 0
    def __call__(self, s):
        for l in s.strip("\n").split("\n"):
            self.lines.append("    " + l.strip() if not l.strip().endswith(":") else l.strip())
    def c(self, s):
        self.lines.append("    ; " + s)
    def label(self, name):
        self.lines.append(name + ":")
    def newlabel(self, p="L"):
        self.nlabel += 1
        return "%s_%d" % (p, self.nlabel)
    def text(self):
        return "\n".join(self.lines) + "\n"

def kernel_begin(name):
    return (".globl %s\n.p2align 8\n.type %s,@function\n%s:\n" % (name, name, name))

def kernel_desc(name, vgpr, sgpr, accum):
    return (""".amdhsa_kernel %s
  .amdhsa_next_free_vgpr %d
  .amdhsa_next_free_sgpr %d
  .amdhsa_accum_offset %d
  .amdhsa_group_segment_fixed_size 0
  .amdhsa_kernarg_size 104
  .amdhsa_user_sgpr_count 2
  .amdhsa_user_sgpr_kernarg_segment_ptr 1
  .amdhsa_system_sgpr_workgroup_id_x 1
.end_amdhsa_kernel
""" % (name, vgpr, sgpr, accum))

def build_file(kernels):
    out = HEADER_COMMENT
    if len(kernels) == 1 and kernels[0]["name"] == NAME + "_kernel":
        k = kernels[0]
        out += "; @launch grid=(%d,1,1) block=(%d,1,1) lds=%d\n" % (k["grid"], k["block"], k["lds"])
    else:
        for k in kernels:
            out += "; @launch kernel=%s grid=(%d,1,1) block=(%d,1,1) lds=%d\n" % (k["name"], k["grid"], k["block"], k["lds"])
    out += '.amdgcn_target "amdgcn-amd-amdhsa--gfx950"\n.text\n'
    seen = set()
    for k in kernels:
        if k["name"] in seen: continue
        seen.add(k["name"])
        out += kernel_begin(k["name"]) + k["body"]
    out += '.section .rodata,"a"\n'
    seen = set()
    for k in kernels:
        if k["name"] in seen: continue
        seen.add(k["name"])
        out += ".p2align 6\n" + kernel_desc(k["name"], k["vgpr"], k["sgpr"], k["accum"])
    return out
```

```python
import re

REG = re.compile(r"\b([vas])(\d+)\b|\b([vas])\[(\d+):(\d+)\]")

def regs_of(op):
    out = []
    for m in REG.finditer(op):
        if m.group(1):
            out.append((m.group(1), int(m.group(2))))
        else:
            for i in range(int(m.group(4)), int(m.group(5)) + 1):
                out.append((m.group(3), i))
    if re.search(r"\bvcc\b", op): out.append(("s", "vcc"))
    if re.search(r"\bm0\b", op): out.append(("s", "m0"))
    if re.search(r"\bexec\b", op): out.append(("s", "exec"))
    return out

TRANS = ("v_exp_f32", "v_log_f32", "v_rcp_f32", "v_rsq_f32", "v_sqrt_f32", "v_sin_f32", "v_cos_f32")

class Ins:
    def __init__(self, text):
        self.text = text
        t = text.split(";")[0].strip()
        parts = t.split(None, 1)
        self.op = parts[0]
        rest = parts[1] if len(parts) > 1 else ""
        ops = []
        depth = 0; cur = ""
        for ch in rest:
            if ch == "[": depth += 1
            if ch == "]": depth -= 1
            if ch == "," and depth == 0:
                ops.append(cur.strip()); cur = ""
            else:
                cur += ch
        if cur.strip(): ops.append(cur.strip())
        self.ops = ops
        op = self.op
        self.is_mfma = op.startswith("v_mfma")
        self.is_valu = op.startswith("v_") and not self.is_mfma
        self.is_trans = op.replace("_e32", "").replace("_e64", "") in TRANS
        self.is_ds = op.startswith("ds_")
        self.is_vmem = op.startswith("buffer_") or op.startswith("global_")
        self.is_lds_dma = self.is_vmem and (" lds" in t or "load_lds" in op)
        self.is_store = self.is_vmem and ("store" in op or "atomic" in op)
        self.defs = []; self.uses = []
        self.srcc = []; self.srcab = []
        if self.is_mfma:
            self.defs = regs_of(ops[0]); self.srcab = regs_of(ops[1]) + regs_of(ops[2]); self.srcc = regs_of(ops[3])
            self.uses = self.srcab + self.srcc
            self.passes = 4 if "16x16x32" in op else 8
        elif op.startswith("v_cmp"):
            self.defs = regs_of(ops[0]); self.uses = [r for o in ops[1:] for r in regs_of(o)]
        elif op.startswith("v_permlane") and "swap" in op:
            self.defs = regs_of(ops[0]) + regs_of(ops[1]); self.uses = list(self.defs)
        elif op in ("v_fmac_f32", "v_fmac_f32_e32"):
            self.defs = regs_of(ops[0]); self.uses = [r for o in ops for r in regs_of(o)]
        elif self.is_valu:
            self.defs = regs_of(ops[0]) if ops else []
            self.uses = [r for o in ops[1:] for r in regs_of(o)]
        elif self.is_ds:
            if "write" in op:
                self.uses = [r for o in ops for r in regs_of(o)]
            else:
                self.defs = regs_of(ops[0]); self.uses = [r for o in ops[1:] for r in regs_of(o)]
        elif self.is_vmem:
            if self.is_lds_dma:
                self.uses = [r for o in ops for r in regs_of(o)] + [("s", "m0")]
            elif self.is_store:
                self.uses = [r for o in ops for r in regs_of(o)]
                self.store_data = regs_of(ops[0]) if op.startswith("buffer_") else regs_of(ops[1])
            elif op.startswith("buffer_wbl2") or op.startswith("buffer_inv"):
                pass
            else:
                self.defs = regs_of(ops[0]); self.uses = [r for o in ops[1:] for r in regs_of(o)]
        elif op.startswith("s_"):
            if op.startswith(("s_cmp", "s_cbranch", "s_branch", "s_waitcnt", "s_barrier", "s_nop", "s_endpgm", "s_setprio", "s_sleep", "s_setpc")):
                self.uses = [r for o in ops for r in regs_of(o)]
            else:
                self.defs = regs_of(ops[0]) if ops else []
                self.uses = [r for o in ops[1:] for r in regs_of(o)]
        self.states = 1
        if op == "s_nop":
            self.states = int(ops[0], 0) + 1

def check(lines, name=""):
    ins = []
    for l in lines:
        t = l.split(";")[0].strip()
        if not t or t.endswith(":") or t.startswith("."):
            continue
        ins.append(Ins(t))
    problems = []
    n = len(ins)
    for i, p in enumerate(ins):
        dist = 0
        for j in range(i + 1, min(n, i + 24)):
            c = ins[j]
            need = 0; why = ""
            pd = set(p.defs)
            vd = {r for r in pd if r[0] in "va"}
            sd = {r for r in pd if r[0] == "s"}
            if p.is_mfma:
                big = {4: 8, 8: 12}[p.passes]
                ovl = {4: 6, 8: 10}[p.passes]
                war = {4: 3, 8: 7}[p.passes]
                if c.is_mfma:
                    if vd & set(c.srcab): need, why = big, "mfma D -> mfma A/B"
                    elif vd & set(c.srcc):
                        if set(c.srcc) != vd or c.passes != p.passes: need, why = ovl, "mfma D -> partial srcC"
                    elif vd & set(c.defs):
                        need, why = ovl, "mfma D -> mfma D (WAW, different C)"
                elif (c.is_valu or c.is_ds or c.is_vmem) and (vd & (set(c.uses) | set(c.defs))):
                    need, why = big, "mfma D -> valu/mem"
                if c.is_valu and set(p.srcc) & set(c.defs) and war > need:
                    need, why = war, "mfma srcC WAR"
            elif p.is_valu:
                if c.is_mfma and vd & set(c.uses): need, why = 2, "valu -> mfma"
                if p.is_trans and c.is_valu and not c.is_trans and vd & set(c.uses): need, why = max(need, 1), "trans -> valu"
                if p.is_trans and (c.is_ds or c.is_vmem) and vd & set(c.uses): need, why = max(need, 1), "trans -> mem"
                if c.op.startswith("v_permlane") and vd & set(c.uses): need, why = max(need, 2), "valu -> permlane"
                if c.op.startswith(("v_readfirstlane", "v_readlane")) and vd & set(c.uses): need, why = max(need, 1), "valu -> readlane"
                if "dpp" in c.text and vd & set(c.uses): need, why = max(need, 2), "valu -> dpp"
                if sd:
                    if c.is_vmem and sd & set(c.uses): need, why = max(need, 5), "valu sgpr -> vmem"
                    if c.is_valu and sd & set(c.uses): need, why = max(need, 2), "valu sgpr -> valu"
                    if ("s", "exec") in sd and c.is_mfma: need, why = max(need, 4), "valu exec -> mfma"
            elif p.op.startswith("s_") and ("s", "m0") in sd:
                if c.is_lds_dma: need, why = 1, "m0 -> lds dma"
            if p.is_store and ("x4" in p.op or "x3" in p.op):
                if set(p.store_data) & set(c.defs):
                    need, why = max(need, 2 if c.is_valu else 1), "store data WAR"
            if need > dist:
                problems.append("%s: %d states < %d (%s)\n    %s\n    %s" % (name, dist, need, why, p.text, c.text))
            dist += c.states
            if dist >= 20 or c.op in ("s_endpgm",):
                break
    return problems
```

```python
import sys, math, struct
from asmgen import *
import hazard

def f32bits(x):
    return struct.unpack("<I", struct.pack("<f", x))[0]

class Cfg:
    stamps = False
    D = 6
    kv_flag = "nt"
    w_flag = ""
    st_flag = ""
    ld2_flag = ""
    BIAS = 7.0

SLOT = 32768
XB = 32768
QB = 88 * 1024
MB = 65536
INBOX = 23040
PART = 92160
STAMPOFF = 32 << 20
NSTAMP = 10

V_LANE, V_C, V_G = 1, 2, 3
V_DMA = 4
V_KA = 8
V_VA = 12
V_T = 20
V_E = 24
V_P = 32
V_S = 52
V_NM = 92
V_O = 112
V_X = 192
A_O = 0
A_L = 80
A_K = 100
A_V = 132
A_Q = 164
A_ONE = 244

def vr(b, n=4): return "v[%d:%d]" % (b, b + n - 1)
def ar(b, n=4): return "a[%d:%d]" % (b, b + n - 1)
def Otile(i, rt):
    return vr(V_O + (i * 5 + rt) * 4) if i < 4 else ar(A_O + ((i - 4) * 5 + rt) * 4)

MFMA = "v_mfma_f32_16x16x32_bf16"

class VM:
    def __init__(self, a): self.a = a; self.q = []
    def issue(self, tag): self.q.append(tag)
    def wait(self, tag):
        idx = max(i for i, t in enumerate(self.q) if t == tag)
        n = len(self.q) - 1 - idx
        if n > 63: n = 63
        self.a("s_waitcnt vmcnt(%d)" % n)
        self.q = self.q[len(self.q) - n:] if n else []
    def has(self, tag): return tag in self.q

def interleave(a, mf, fill, lead=0):
    tot = sum(c for _, c in fill)
    n = len(mf)
    acc = 0.0; k = 0
    for i, m in enumerate(mf):
        a(m)
        if i < lead: continue
        target = tot * (i + 1 - lead) / float(n - lead)
        while k < len(fill) and acc + fill[k][1] * 0.5 <= target:
            a(fill[k][0]); acc += fill[k][1]; k += 1
    while k < len(fill):
        a(fill[k][0]); k += 1

def gen_main(cfg):
    a = Asm()
    nst = [0]
    def stamp():
        if cfg.stamps:
            i = nst[0]; nst[0] += 1
            a("s_memrealtime s[%d:%d]" % (64 + 2 * i, 65 + 2 * i))
            a("s_waitcnt lgkmcnt(0)")
    a("s_cmp_ge_u32 s2, 256")
    a("s_cbranch_scc1 L_end")
    stamp()
    a.c("decode work item: xcd = wg&7, j = wg>>3, grp = xcd*4 + (j>>3), b = j&7, branch = grp>>4, hkv = grp&15")
    a("""
    s_and_b32 s3, s2, 7
    s_lshr_b32 s4, s2, 3
    s_lshr_b32 s5, s4, 3
    s_lshl_b32 s3, s3, 2
    s_add_u32 s3, s3, s5
    s_and_b32 s4, s4, 7
    s_and_b32 s5, s3, 15
    s_lshr_b32 s3, s3, 4
    s_mul_i32 s6, s3, 40
    s_add_u32 s8, s0, s6
    s_addc_u32 s9, s1, 0
    s_load_dwordx2 s[16:17], s[8:9], 0
    s_load_dwordx2 s[12:13], s[8:9], 8
    s_load_dwordx2 s[44:45], s[8:9], 16
    s_load_dwordx2 s[20:21], s[8:9], 24
    s_load_dwordx2 s[24:25], s[8:9], 32
    s_load_dwordx2 s[28:29], s[0:1], 96
    v_lshrrev_b32 v4, 6, v0
    v_and_b32 v1, 63, v0
    v_readfirstlane_b32 s6, v4
    v_and_b32 v2, 15, v0
    v_lshrrev_b32 v3, 4, v1
    s_lshr_b32 s7, s6, 1
    s_and_b32 s8, s6, 1
    """)
    a.c("s3=branch s4=b s5=hkv s6=wave s7=qh s8=kh")
    a("""
    v_mul_u32_u24 v20, 1152, v2
    v_lshl_add_u32 v20, v3, 4, v20
    s_waitcnt lgkmcnt(0)
    s_mul_i32 s9, s4, 92160
    s_add_u32 s16, s16, s9
    s_addc_u32 s17, s17, 0
    s_and_b32 s17, s17, 0xffff
    s_mov_b32 s18, 92160
    s_mov_b32 s19, 0x20000
    """)
    vm = VM(a)
    a.c("x -> LDS (fragment order), wave w loads k-steps w, w+4, ...")
    for i in range(5):
        a("s_add_u32 s10, s6, %d" % (4 * i))
        if i == 4: a("s_min_u32 s10, s10, 17")
        a("s_mul_i32 s11, s10, 5120")
        a("s_lshl_b32 s10, s10, 6")
        a("s_add_u32 m0, s11, %d" % XB)
        for rt in range(5):
            if rt == 4:
                a("s_add_u32 m0, s11, %d" % (XB + 4096))
                a("s_add_u32 s10, s10, %d" % (18432 - 1024 + 4096))
                a("buffer_load_dwordx4 v20, s[16:19], s10 offen %s lds" % cfg.w_flag)
            else:
                if rt: a("s_add_u32 s10, s10, %d" % (18432 - 1024))
                else: a("s_nop 0")
                a("buffer_load_dwordx4 v20, s[16:19], s10 offen offset:%d %s lds" % (rt * 1024, cfg.w_flag))
            vm.issue("x")
    a.c("wq SRD: base + (hkv*256 + wave*64)*2")
    a("""
    s_lshl_b32 s9, s5, 9
    s_lshl_b32 s10, s6, 7
    s_add_u32 s9, s9, s10
    s_add_u32 s20, s20, s9
    s_addc_u32 s21, s21, 0
    s_and_b32 s21, s21, 0xffff
    s_sub_u32 s22, %d, s9
    s_mov_b32 s23, 0x20000
    v_lshlrev_b32 v24, 16, v3
    v_lshl_add_u32 v24, v2, 3, v24
    """ % (576 * 8192))
    for j in range(1, 8):
        a("v_add_u32 v%d, %d, v24" % (24 + j, j * 8192))
    RAW = [32, 48, 64, 80, 96, 224, 240][:cfg.D]
    def wq_issue(ks):
        base = RAW[ks % cfg.D]
        out = ["s_mov_b32 s10, %d" % (ks * 262144)]
        for j in range(8):
            out.append("buffer_load_dwordx2 %s, v%d, s[20:23], s10 offen %s" % (vr(base + 2 * j, 2), 24 + j, cfg.w_flag))
        return out
    NPRE = 4
    for ks in range(NPRE):
        for l in wq_issue(ks): a(l)
        for j in range(8): vm.issue("wq%d" % ks)
    a.c("K/V DMA SRD (waves 0,1: K ; waves 2,3: V)")
    a("""
    s_cmp_eq_u32 s7, 0
    s_cselect_b32 s12, s12, s44
    s_cselect_b32 s13, s13, s45
    s_lshl_b32 s9, s4, 4
    s_add_u32 s9, s9, s5
    s_lshl_b32 s9, s9, 18
    s_add_u32 s12, s12, s9
    s_addc_u32 s13, s13, 0
    s_and_b32 s13, s13, 0xffff
    s_mov_b32 s14, 262144
    s_mov_b32 s15, 0x20000
    v_lshlrev_b32 v21, s7, v3
    v_xor_b32 v21, v21, v2
    s_cmp_eq_u32 s7, 0
    s_cselect_b32 s9, 4, 8
    s_cselect_b32 s10, 8, 0
    s_cselect_b32 s11, 12, 8
    v_lshlrev_b32 v22, 8, v3
    v_lshl_add_u32 v4, v21, 4, v22
    v_xor_b32 v23, s9, v21
    v_lshl_add_u32 v5, v23, 4, v22
    v_xor_b32 v23, s10, v21
    v_lshl_add_u32 v6, v23, 4, v22
    v_xor_b32 v23, s11, v21
    v_lshl_add_u32 v7, v23, 4, v22
    s_lshl_b32 s32, s8, 13
    s_lshl_b32 s33, s6, 13
    """)
    a.c("s32 = global offset of next K/V stage for this wave, s33 = wave*8192")
    def kv_issue_static(stage):
        slot = (stage + 4) % 5
        out = []
        for h in range(2):
            out.append("s_add_u32 m0, s33, %d" % (slot * SLOT + h * 4096))
            out.append("s_add_u32 s10, s32, %d" % (stage * 16384 + h * 4096))
            for j in range(4):
                out.append("buffer_load_dwordx4 v%d, s[12:15], s10 offen offset:%d %s lds" % (V_DMA + j, j * 1024, cfg.kv_flag))
        return out
    for l in kv_issue_static(0): a(l)
    for j in range(8): vm.issue("kv0")
    a.c("wo / ws SRDs")
    a("""
    s_mul_i32 s9, s5, 294912
    s_add_u32 s24, s24, s9
    s_addc_u32 s25, s25, 0
    s_and_b32 s25, s25, 0xffff
    s_mov_b32 s26, 294912
    s_mov_b32 s27, 0x20000
    s_mov_b32 s46, s28
    s_and_b32 s47, s29, 0xffff
    s_lshl_b32 s9, s3, 3
    s_add_u32 s9, s9, s4
    s_lshl_b32 s9, s9, 4
    s_add_u32 s9, s9, s5
    s_mul_i32 s9, s9, %d
    s_add_u32 s28, s28, s9
    s_addc_u32 s29, s29, 0
    s_and_b32 s29, s29, 0xffff
    s_mov_b32 s30, %d
    s_mov_b32 s31, 0x20000
    s_mov_b32 s36, 0x05040100
    s_mov_b32 s37, 0x07060302
    s_mov_b32 s38, 0x40004000
    s_mov_b32 s40, 0x%08x
    s_mov_b32 s41, 0x%08x
    """ % (PART, PART, f32bits(math.log2(math.e) / math.sqrt(128.0)), f32bits(math.log2(math.e) / math.sqrt(128.0))))
    a.c("K read addresses (slot 4 = stage 0)")
    a("""
    v_lshlrev_b32 v21, 1, v3
    v_xor_b32 v21, v21, v2
    s_lshl_b32 s9, s8, 13
    s_add_u32 s9, s9, %d
    v_lshlrev_b32 v22, 8, v2
    v_add_u32 v22, s9, v22
    """ % (4 * SLOT))
    for ks in range(4):
        kc = 8 * (ks >> 1) + (ks & 1)
        a("v_xor_b32 v23, %d, v21" % kc)
        a("v_lshl_add_u32 v%d, v23, 4, v22" % (V_KA + ks))
    a.c("V read addresses")
    a("""
    v_lshrrev_b32 v21, 2, v2
    v_lshl_add_u32 v22, v3, 2, v21
    v_and_b32 v21, 7, v22
    v_lshlrev_b32 v22, 8, v22
    v_and_b32 v23, 3, v2
    v_lshl_add_u32 v22, v23, 3, v22
    s_add_u32 s9, s9, 16384
    v_add_u32 v22, s9, v22
    s_lshl_b32 s10, s8, 2
    v_xor_b32 v21, s10, v21
    """)
    for i in range(8):
        a("v_xor_b32 v23, %d, v21" % i)
        a("v_lshl_add_u32 v%d, v23, 5, v22" % (V_VA + i))
    a("s_mov_b32 s9, 0x3f803f80")
    for i in range(4): a("v_accvgpr_write_b32 a%d, s9" % (A_ONE + i))
    a("v_lshlrev_b32 v20, 4, v1")
    a("v_add_u32 v21, %d, v20" % (XB + 45 * 1024))
    a("v_add_u32 v20, %d, v20" % XB)
    for ks in range(NPRE, cfg.D):
        for l in wq_issue(ks): a(l)
        for j in range(8): vm.issue("wq%d" % ks)
    vm.wait("x")
    a("s_barrier")
    stamp()
    XF = [100, 120]
    WF = [192, 208]
    def x_reads(ks):
        out = []
        for rt in range(5):
            n = ks * 5 + rt
            reg, off = (20, n * 1024) if n < 45 else (21, (n - 45) * 1024)
            out.append(("ds_read_b128 %s, v%d offset:%d" % (ar(XF[ks & 1] + rt * 4), reg, off), 4))
        return out
    def perms(ks):
        base = RAW[ks % cfg.D]; out = []
        for i in range(4):
            for t in range(4):
                lo = base + 2 * (2 * t) + (i >> 1); hi = base + 2 * (2 * t + 1) + (i >> 1)
                out.append(("v_perm_b32 v%d, v%d, v%d, s%d" % (WF[ks & 1] + i * 4 + t, hi, lo, 36 + (i & 1)), 4))
        return out
    for l, _ in x_reads(0): a(l)
    vm.wait("wq0")
    for l, _ in perms(0): a(l)
    for ks in range(18):
        fill = []
        if ks + 1 < 18:
            fill += x_reads(ks + 1)
        pre = []
        if ks + cfg.D < 18:
            pre = [(l, 6) for l in wq_issue(ks + cfg.D)]
        if ks == 0:
            pre += [(l, 6) for l in kv_issue_static(1)]
        mf = []
        for rt in range(5):
            for i in range(4):
                acc = vr(V_O + (i * 5 + rt) * 4)
                mf.append("%s %s, %s, %s, %s" % (MFMA, acc, vr(WF[ks & 1] + i * 4), ar(XF[ks & 1] + rt * 4), "0" if ks == 0 else acc))
        a("s_waitcnt lgkmcnt(0)")
        a("s_nop 0")
        interleave(a, mf[:8], pre + fill)
        if ks + cfg.D < 18:
            for j in range(8): vm.issue("wq%d" % (ks + cfg.D))
        if ks == 0:
            for j in range(8): vm.issue("kv1")
        if ks + 1 < 18:
            vm.wait("wq%d" % (ks + 1))
            interleave(a, mf[8:], perms(ks + 1))
        else:
            interleave(a, mf[8:], [])
    stamp()
    a("s_barrier")
    for l in kv_issue_static(2): a(l)
    for j in range(8): vm.issue("kv2")
    a.c("scale, convert, exchange Q")
    a("""
    s_mul_i32 s9, s7, 20480
    s_add_u32 s9, s9, %d
    v_lshlrev_b32 v20, 4, v1
    v_add_u32 v20, s9, v20
    s_lshl_b32 s10, s8, 11
    v_add_u32 v21, s10, v20
    """ % QB)
    for rt in range(5):
        for i in range(4):
            b = V_O + (i * 5 + rt) * 4
            a("v_pk_mul_f32 %s, %s, s[40:41]" % (vr(b, 2), vr(b, 2)))
            a("v_pk_mul_f32 %s, %s, s[40:41]" % (vr(b + 2, 2), vr(b + 2, 2)))
        for u in range(2):
            d = 32 + (rt * 2 + u) * 4
            for t in range(4):
                r = 2 * u + (t >> 1); i = 2 * (t & 1)
                a("v_cvt_pk_bf16_f32 v%d, v%d, v%d" % (d + t, V_O + (i * 5 + rt) * 4 + r, V_O + ((i + 1) * 5 + rt) * 4 + r))
            a("ds_write_b128 v21, %s offset:%d" % (vr(d), (rt * 4 + u) * 1024))
    a("s_waitcnt lgkmcnt(0)")
    a("s_barrier")
    for rt in range(5):
        for ks in range(4):
            a("ds_read_b128 %s, v20 offset:%d" % (ar(A_Q + (rt * 4 + ks) * 4), (rt * 4 + ks) * 1024))
    for i in range(20): a("v_mov_b32 v%d, 0" % (V_NM + i))
    a("s_waitcnt lgkmcnt(0)")
    a("s_barrier")
    for st in (3, 4):
        for l in kv_issue_static(st): a(l)
    a("""
    v_lshrrev_b32 v21, 3, v1
    v_mul_u32_u24 v23, 1152, v21
    v_and_b32 v21, 6, v21
    v_and_b32 v22, 7, v1
    v_xor_b32 v21, v21, v22
    v_lshl_add_u32 v23, v21, 4, v23
    s_add_u32 s32, s32, %d
    s_mov_b32 s34, 0
    s_mov_b32 s39, -1
    s_mov_b32 s42, 0xff800000
    s_mov_b32 s44, %d
    s_mov_b32 s43, 0
    s_mul_i32 s35, s6, %d
    """ % (5 * 16384, 4 * SLOT, 8 * 9216))
    a.c("s34=stage s39=force-slow compare value s42=delta floor s44=LDS offset of current slot s43=LDS offset of previous stage's slot s35=wo row offset of wave")
    stamp()
    loop_start = len(a.lines)
    a.label("L_loop")
    a("s_cmp_eq_u32 s34, 15")
    a("s_cbranch_scc1 L_w16")
    a("s_waitcnt vmcnt(24)")
    a.label("L_wdone")
    a("s_barrier")
    for ks in range(4):
        for kt in range(2):
            a("ds_read_b128 %s, v%d offset:%d" % (ar(A_K + (kt * 4 + ks) * 4), V_KA + ks, kt * 4096))
    a.c("DMA issue: stage s+4 into the slot of stage s-1")
    a("s_cmp_eq_u32 s34, 0")
    a("s_cbranch_scc1 L_dma_done")
    a("s_add_u32 s9, s33, s43")
    a("s_cmp_ge_u32 s34, 12")
    a("s_cbranch_scc1 L_dma_wo")
    for h in range(2):
        a("s_add_u32 m0, s9, %d" % (h * 4096))
        a("s_add_u32 s10, s32, %d" % (h * 4096))
        for j in range(4):
            a("buffer_load_dwordx4 v%d, s[12:15], s10 offen offset:%d %s lds" % (V_DMA + j, j * 1024, cfg.kv_flag))
    a("s_add_u32 s32, s32, 16384")
    a.label("L_dma_done")
    vreads = []
    for i in range(8):
        for h in range(2):
            vreads.append(("ds_read_b64_tr_b16 %s, v%d offset:%d" % (ar(A_V + i * 4 + 2 * h, 2), V_VA + i, h * 4096), 4))
    def QK(rt):
        out = []
        for ks in range(4):
            for kt in range(2):
                s = vr(V_S + rt * 8 + kt * 4)
                out.append("%s %s, %s, %s, %s" % (MFMA, s, ar(A_K + (kt * 4 + ks) * 4), ar(A_Q + (rt * 4 + ks) * 4),
                                                   vr(V_NM + rt * 4) if ks == 0 else s))
        return out
    def PV(rt):
        out = []
        for i in range(8):
            out.append("%s %s, %s, %s, %s" % (MFMA, Otile(i, rt), ar(A_V + i * 4), vr(V_P + rt * 4), Otile(i, rt)))
        out.append("%s %s, %s, %s, %s" % (MFMA, ar(A_L + rt * 4), ar(A_ONE), vr(V_P + rt * 4), ar(A_L + rt * 4)))
        return out
    def SM(rt):
        out = []
        for t in range(4):
            out.append(("v_exp_f32 v%d, v%d" % (V_E + 2 * t, V_S + rt * 8 + 2 * t), 8))
            out.append(("v_exp_f32 v%d, v%d" % (V_E + 2 * t + 1, V_S + rt * 8 + 2 * t + 1), 8))
            if t > 0:
                out.append(("v_cvt_pk_bf16_f32 v%d, v%d, v%d" % (V_P + rt * 4 + t - 1, V_E + 2 * t - 2, V_E + 2 * t - 1), 4))
        p = V_P + rt * 4
        out.append(("v_or3_b32 v%d, v%d, v%d, v%d" % (V_T, p, p + 1, p + 2), 4))
        out.append(("v_cvt_pk_bf16_f32 v%d, v%d, v%d" % (p + 3, V_E + 6, V_E + 7), 4))
        out.append(("v_bitop3_b32 v%d, v%d, v%d, s38 bitop3:0xa8" % (V_T, V_T, p + 3), 4))
        out.append(("v_cmp_ne_u32 vcc, s39, v%d" % V_T, 4))
        return out
    def CHECK(rt):
        a("s_cbranch_vccnz L_slow%d" % rt)
        a.label("L_back%d" % rt)
    adv = [("v_add_u32 v%d, s11, v%d" % (r, r), 4) for r in list(range(V_KA, V_KA + 4)) + list(range(V_VA, V_VA + 8))]
    a("s_waitcnt lgkmcnt(0)")
    interleave(a, QK(0), vreads)
    slotadv = [("s_mov_b32 s43, s44", 4), ("s_add_u32 s44, s44, %d" % SLOT, 4), ("s_cmp_eq_u32 s44, %d" % (5 * SLOT), 4),
               ("s_cselect_b32 s44, 0, s44", 4), ("s_sub_u32 s11, s44, s43", 4)]
    q1 = QK(1)
    interleave(a, q1[:4], slotadv)
    interleave(a, q1[4:], SM(0))
    CHECK(0)
    a("s_waitcnt lgkmcnt(0)")
    interleave(a, QK(2) + PV(0), SM(1), lead=2)
    CHECK(1)
    interleave(a, QK(3) + PV(1), SM(2))
    CHECK(2)
    interleave(a, QK(4) + PV(2), SM(3))
    CHECK(3)
    interleave(a, PV(3), SM(4))
    CHECK(4)
    interleave(a, PV(4), adv)
    a("s_mov_b32 s39, 0")
    a("s_mov_b32 s42, 0")
    a("s_add_u32 s34, s34, 1")
    a("s_cmp_lt_u32 s34, 16")
    a("s_cbranch_scc1 L_loop")
    loop_end = len(a.lines)
    stamp()
    a.c("merge")
    a("""
    s_xor_b32 s9, s6, 1
    s_mul_i32 s9, s9, %d
    s_add_u32 s9, s9, %d
    s_mul_i32 s10, s6, %d
    s_add_u32 s10, s10, %d
    v_lshlrev_b32 v20, 4, v1
    v_add_u32 v21, s10, v20
    v_add_u32 v20, s9, v20
    v_lshlrev_b32 v22, 2, v1
    v_add_u32 v24, s10, v22
    v_add_u32 v22, s9, v22
    s_barrier
    """ % (INBOX, MB, INBOX, MB))
    a.c("v20: partner inbox (b128) v22: partner inbox (b32) v21: own inbox (b128) v24: own inbox (b32)")
    for rt in range(5):
        a("ds_write_b32 v22, v%d offset:%d" % (V_NM + rt * 4, 20480 + rt * 256))
        a("ds_write_b32 v22, a%d offset:%d" % (A_L + rt * 4, 20480 + (5 + rt) * 256))
    for rt in range(5):
        for i in range(4):
            a("ds_write_b128 v20, %s offset:%d" % (Otile(4 + i, rt), (rt * 4 + i) * 1024))
    for rt in range(5):
        a("v_accvgpr_read_b32 v%d, a%d" % (V_NM + rt * 4 + 1, A_L + rt * 4))
    a("s_waitcnt vmcnt(0) lgkmcnt(0)")
    a("s_barrier")
    for rt in range(5):
        a("ds_read_b32 v%d, v24 offset:%d" % (52 + rt, 20480 + rt * 256))
        a("ds_read_b32 v%d, v24 offset:%d" % (57 + rt, 20480 + (5 + rt) * 256))
    def IN(rt, i):
        n = rt * 4 + i
        return (V_X + n * 4) if n < 16 else (32 + (n - 16) * 4)
    inreads = ["ds_read_b128 %s, v21 offset:%d" % (vr(IN(rt, i)), (rt * 4 + i) * 1024) for rt in range(5) for i in range(4)]
    for l in inreads[:4]: a(l)
    a("""
    v_lshrrev_b32 v26, 2, v2
    v_and_b32 v27, 1, v3
    v_lshl_add_u32 v26, v27, 2, v26
    v_lshrrev_b32 v27, 1, v26
    v_xor_b32 v27, s6, v27
    v_lshlrev_b32 v25, 7, v26
    v_lshl_add_u32 v25, v27, 5, v25
    v_and_b32 v27, 3, v2
    v_lshl_add_u32 v25, v27, 3, v25
    v_lshrrev_b32 v27, 1, v3
    v_lshl_add_u32 v25, v27, 10, v25
    v_add_u32 v26, 0x10000, v25
    v_add_u32 v27, 0x20000, v25
    s_waitcnt lgkmcnt(4)
    """)
    for l in inreads[4:]: a(l)
    for rt in range(5):
        nm = V_NM + rt * 4
        a("v_min_f32 v%d, v%d, v%d" % (nm + 2, nm, 52 + rt))
        a("v_sub_f32 v%d, v%d, v%d" % (nm, nm + 2, nm))
        a("v_sub_f32 v%d, v%d, v%d" % (52 + rt, nm + 2, 52 + rt))
    for rt in range(5):
        nm = V_NM + rt * 4
        a("v_exp_f32 v%d, v%d" % (nm, nm))
        a("v_exp_f32 v%d, v%d" % (52 + rt, 52 + rt))
    for rt in range(5):
        nm = V_NM + rt * 4
        a("v_mul_f32 v%d, v%d, v%d" % (nm + 1, nm, nm + 1))
        a("v_fmac_f32 v%d, v%d, v%d" % (nm + 1, 52 + rt, 57 + rt))
    for rt in range(5):
        nm = V_NM + rt * 4
        a("v_rcp_f32 v%d, v%d" % (nm + 1, nm + 1))
    for rt in range(5):
        nm = V_NM + rt * 4
        a("v_mul_f32 v%d, v%d, v%d" % (64 + 2 * rt, nm, nm + 1))
        a("v_mul_f32 v%d, v%d, v%d" % (74 + 2 * rt, 52 + rt, nm + 1))
    a("s_waitcnt lgkmcnt(0)")
    for rt in range(5):
        for i in range(4):
            o = V_O + (i * 5 + rt) * 4
            for h in range(2):
                a("v_pk_mul_f32 %s, %s, %s op_sel_hi:[1,0]" % (vr(o + 2 * h, 2), vr(o + 2 * h, 2), vr(64 + 2 * rt, 2)))
                a("v_pk_fma_f32 %s, %s, %s, %s op_sel_hi:[1,0,1]" % (vr(o + 2 * h, 2), vr(IN(rt, i) + 2 * h, 2), vr(74 + 2 * rt, 2), vr(o + 2 * h, 2)))
        for e in range(2):
            d = 84 + e * 4
            for t in range(4):
                o = V_O + ((2 * e + (t >> 1)) * 5 + rt) * 4 + 2 * (t & 1)
                a("v_cvt_pk_bf16_f32 v%d, v%d, v%d" % (d + t, o, o + 1))
            a("ds_write_b128 v21, %s offset:%d" % (vr(d), (e * 5 + rt) * 1024))
    a("v_lshlrev_b32 v20, 4, v1")
    a("v_add_u32 v21, %d, v20" % (MB + 2 * INBOX))
    a("v_add_u32 v20, %d, v20" % MB)
    a("s_waitcnt lgkmcnt(0)")
    a("s_barrier")
    stamp()
    A_OF = 0
    A_WF = [160, 192]
    V_ACC = [32, 52]
    V_ST = [72, 84]
    def wf_reads(cg):
        slot = cg % 5
        reg, off = 25 + (slot >> 1), (slot & 1) * SLOT
        out = []
        for kk in range(8):
            for h in range(2):
                out.append(("ds_read_b64_tr_b16 %s, v%d offset:%d" % (ar(A_WF[cg & 1] + kk * 4 + 2 * h, 2), reg, off + kk * 4096 + h * 2048), 4))
        return out
    def wo_issue(cg):
        slot = cg % 5
        out = []
        for h in range(2):
            out.append(("s_add_u32 m0, s33, %d" % (slot * SLOT + h * 4096), 4))
            for j in range(4):
                out.append(("s_add_u32 s10, s35, %d\nbuffer_load_dwordx4 v23, s[24:27], s10 offen offset:%d %s lds" % (
                    cg * 128 + (h * 4 + j) * 9216 - j * 1024, j * 1024, cfg.w_flag), 12))
        return out
    for l, _ in wf_reads(0): a(l)
    for kk in range(8):
        for rt in range(5):
            w = kk >> 1
            reg, off = (20, w * INBOX) if w < 2 else (21, (w - 2) * INBOX)
            a("ds_read_b128 %s, v%d offset:%d" % (ar(A_OF + (kk * 5 + rt) * 4), reg, off + ((kk & 1) * 5 + rt) * 1024))
    a("""
    s_mul_i32 s9, s6, 2560
    v_lshlrev_b32 v28, 4, v1
    v_add_u32 v28, s9, v28
    v_lshlrev_b32 v29, 3, v1
    v_add_u32 v29, s9, v29
    s_waitcnt lgkmcnt(0)
    s_barrier
    """)
    vm = VM(a)
    for cg in (2, 3, 4, 5):
        for l, _ in wo_issue(cg): a(l)
        for j in range(8): vm.issue("wo%d" % cg)
    def stores(cg):
        acc = V_ACC[cg & 1]; st = V_ST[cg & 1]
        out = []
        for rt in range(5):
            out.append(("v_cvt_pk_bf16_f32 v%d, v%d, v%d" % (st + 2 * rt, acc + rt * 4, acc + rt * 4 + 1), 4))
            out.append(("v_cvt_pk_bf16_f32 v%d, v%d, v%d" % (st + 2 * rt + 1, acc + rt * 4 + 2, acc + rt * 4 + 3), 4))
        out.append(("s_mov_b32 s11, %d" % (cg * 10240), 4))
        out.append(("buffer_store_dwordx4 %s, v28, s[28:31], s11 offen %s" % (vr(st), cfg.st_flag), 8))
        out.append(("buffer_store_dwordx4 %s, v28, s[28:31], s11 offen offset:1024 %s" % (vr(st + 4), cfg.st_flag), 8))
        out.append(("buffer_store_dwordx2 %s, v29, s[28:31], s11 offen offset:2048 %s" % (vr(st + 8, 2), cfg.st_flag), 8))
        return out
    for cg in range(9):
        mf = []
        for kk in range(8):
            for rt in range(5):
                acc = vr(V_ACC[cg & 1] + rt * 4)
                mf.append("%s %s, %s, %s, %s" % (MFMA, acc, ar(A_WF[cg & 1] + kk * 4), ar(A_OF + (kk * 5 + rt) * 4), "0" if kk == 0 else acc))
        fill = []
        if cg > 0:
            a("s_waitcnt lgkmcnt(0)")
        if cg + 1 < 9:
            if vm.has("wo%d" % (cg + 1)): vm.wait("wo%d" % (cg + 1))
            if cg > 0: a("s_barrier")
            fill += wf_reads(cg + 1)
            if cg > 0 and cg + 4 < 9:
                pass
        dma = []
        if cg + 5 < 9 and cg > 0:
            dma = wo_issue(cg + 5)
        elif cg == 0 and False:
            pass
        st = stores(cg - 1) if cg > 0 else []
        interleave(a, mf, fill + st + dma, lead=1)
        for _ in range(3 if cg > 0 else 0): vm.issue("st")
        if dma:
            for j in range(8): vm.issue("wo%d" % (cg + 5))
        if cg == 0:
            pass
    a("s_nop 7")
    for l, _ in stores(8): a(l)
    stamp()
    if cfg.stamps:
        a("s_waitcnt vmcnt(0)")
        stamp()
        a("s_mov_b32 s44, s46")
        a("s_mov_b32 s45, s47")
        a("s_mov_b32 s46, 0x10000000")
        a("s_mov_b32 s47, 0x20000")
        a("s_mul_i32 s9, s2, %d" % (NSTAMP * 8))
        a("s_add_u32 s9, s9, %d" % STAMPOFF)
        a("v_mov_b32 v4, s9")
        a("v_cmp_eq_u32 vcc, 0, v0")
        a("s_and_saveexec_b64 s[10:11], vcc")
        a("s_cbranch_execz L_end")
        for i in range(NSTAMP):
            k = min(i, nst[0] - 1)
            a("v_mov_b32 v6, s%d" % (64 + 2 * k))
            a("v_mov_b32 v7, s%d" % (65 + 2 * k))
            a("buffer_store_dwordx2 v[6:7], v4, s[44:47], 0 offen offset:%d" % (i * 8))
    a.label("L_end")
    a("s_endpgm")
    main_end = len(a.lines)
    a.label("L_w16")
    a("s_waitcnt vmcnt(16)")
    a("s_branch L_wdone")
    a.label("L_dma_wo")
    a("s_cmp_ge_u32 s34, 14")
    a("s_cbranch_scc1 L_dma_done")
    a("s_sub_u32 s11, s34, 12")
    a("s_lshl_b32 s11, s11, 7")
    a("s_add_u32 s11, s11, s35")
    for h in range(2):
        a("s_add_u32 m0, s9, %d" % (h * 4096))
        for j in range(4):
            a("s_add_u32 s10, s11, %d" % ((h * 4 + j) * 9216 - j * 1024))
            a("buffer_load_dwordx4 v23, s[24:27], s10 offen offset:%d %s lds" % (j * 1024, cfg.w_flag))
    a("s_branch L_dma_done")
    slow = []
    for rt in range(5):
        b0 = len(a.lines)
        a.label("L_slow%d" % rt)
        S = V_S + rt * 8
        a("s_nop 7")
        a("v_max3_f32 v20, v%d, v%d, v%d" % (S, S + 1, S + 2))
        a("v_max3_f32 v20, v20, v%d, v%d" % (S + 3, S + 4))
        a("v_max3_f32 v20, v20, v%d, v%d" % (S + 5, S + 6))
        a("v_max_f32 v20, v20, v%d" % (S + 7))
        a("v_mov_b32 v21, v20")
        a("s_nop 1")
        a("v_permlane32_swap_b32 v20, v21")
        a("v_max_f32 v20, v20, v21")
        a("v_mov_b32 v21, v20")
        a("s_nop 1")
        a("v_permlane16_swap_b32 v20, v21")
        a("v_max_f32 v20, v20, v21")
        a("v_add_f32 v20, 0x%08x, v20" % f32bits(cfg.BIAS))
        a("v_max_f32 v20, s42, v20")
        a.c("v20 = delta")
        for r in range(4):
            a("v_sub_f32 v%d, v%d, v20" % (V_NM + rt * 4 + r, V_NM + rt * 4 + r))
        for t in range(8):
            a("v_sub_f32 v%d, v%d, v20" % (V_E + t, S + t))
        for t in range(8):
            a("v_exp_f32 v%d, v%d" % (V_E + t, V_E + t))
        a("v_exp_f32 v21, -v20")
        for t in range(4):
            a("v_cvt_pk_bf16_f32 v%d, v%d, v%d" % (V_P + rt * 4 + t, V_E + 2 * t, V_E + 2 * t + 1))
        a("s_cmp_eq_u32 s34, 0")
        a("s_cbranch_scc1 L_init%d" % rt)
        regs_v = [V_O + (i * 5 + rt) * 4 + r for i in range(4) for r in range(4)]
        regs_a = [A_O + (i * 5 + rt) * 4 + r for i in range(4) for r in range(4)] + [A_L + rt * 4 + r for r in range(4)]
        for r in regs_v: a("v_mul_f32 v%d, v%d, v21" % (r, r))
        for k in range(0, 20, 4):
            for q in range(4): a("v_accvgpr_read_b32 v%d, a%d" % (V_E + q, regs_a[k + q]))
            for q in range(4): a("v_mul_f32 v%d, v%d, v21" % (V_E + q, V_E + q))
            for q in range(4): a("v_accvgpr_write_b32 a%d, v%d" % (regs_a[k + q], V_E + q))
        a("s_nop 1")
        a("s_branch L_back%d" % rt)
        a.label("L_init%d" % rt)
        for r in regs_v[::2]: a("v_mov_b64 %s, 0" % vr(r, 2))
        for r in regs_a: a("v_accvgpr_write_b32 a%d, 0" % r)
        a("s_nop 1")
        a("s_branch L_back%d" % rt)
    L = a.lines
    probs = hazard.check(L[:loop_end] + L[loop_start:main_end], "main") + hazard.check(L[main_end:], "ool")
    for p in probs: print("HAZARD", p)
    return a.text()

def gen_reduce(cfg):
    a = Asm()
    a("""
    s_cmp_ge_u32 s2, 480
    s_cbranch_scc1 L2_end
    s_load_dwordx2 s[4:5], s[0:1], 96
    s_load_dwordx2 s[8:9], s[0:1], 80
    s_mul_i32 s3, s2, 2185
    s_lshr_b32 s3, s3, 16
    s_mul_i32 s12, s3, 30
    s_sub_u32 s12, s2, s12
    s_mul_i32 s12, s12, 192
    v_add_u32 v1, s12, v0
    v_lshlrev_b32 v2, 4, v1
    s_mul_i32 s13, s3, %d
    s_waitcnt lgkmcnt(0)
    s_add_u32 s4, s4, s13
    s_addc_u32 s5, s5, 0
    s_and_b32 s5, s5, 0xffff
    s_mov_b32 s6, %d
    s_mov_b32 s7, 0x20000
    """ % (16 * PART, 16 * PART))
    for h in range(16):
        a("s_mov_b32 s14, %d" % (h * PART))
        a("buffer_load_dwordx4 %s, v2, s[4:7], s14 offen %s" % (vr(16 + 4 * h), cfg.ld2_flag))
    a("""
    s_and_b32 s9, s9, 0xffff
    s_mov_b32 s10, %d
    s_mov_b32 s11, 0x20000
    v_mul_u32_u24 v3, 52429, v1
    v_lshrrev_b32 v3, 23, v3
    v_mul_u32_u24 v4, 160, v3
    v_sub_u32 v4, v1, v4
    v_lshlrev_b32 v3, 5, v3
    v_cmp_gt_u32 vcc, 128, v4
    v_and_b32 v5, 63, v4
    v_lshrrev_b32 v6, 6, v4
    v_lshlrev_b32 v6, 5, v6
    v_lshlrev_b32 v7, 1, v5
    v_cndmask_b32 v5, v7, v5, vcc
    v_and_b32 v7, 15, v5
    v_add_u32 v6, v6, v7
    v_lshrrev_b32 v5, 4, v5
    v_lshl_add_u32 v3, v5, 3, v3
    v_mul_u32_u24 v6, 2304, v6
    v_add_u32 v3, v3, v6
    v_mov_b32 v7, 2304
    v_mov_b32 v8, %d
    v_cndmask_b32 v7, v7, v8, vcc
    s_and_b32 s13, s3, 7
    s_mul_i32 s13, s13, %d
    s_lshr_b32 s14, s3, 3
    s_mul_i32 s14, s14, 1152
    s_add_u32 s13, s13, s14
    v_add_u32 v3, s13, v3
    v_add_u32 v4, v3, v7
    """ % (8 * 80 * 1152 * 2, 16 * 2304, 80 * 2304))
    for h in range(16):
        a("s_waitcnt vmcnt(%d)" % (15 - h))
        for d in range(4):
            r = 16 + 4 * h + d
            if h == 0:
                a("v_lshlrev_b32 v%d, 16, v%d" % (8 + 2 * d, r))
                a("v_and_b32 v%d, 0xffff0000, v%d" % (9 + 2 * d, r))
            else:
                a("v_lshlrev_b32 v5, 16, v%d" % r)
                a("v_and_b32 v6, 0xffff0000, v%d" % r)
                a("v_add_f32 v%d, v%d, v5" % (8 + 2 * d, 8 + 2 * d))
                a("v_add_f32 v%d, v%d, v6" % (9 + 2 * d, 9 + 2 * d))
    for d in range(4):
        a("v_cvt_pk_bf16_f32 v%d, v%d, v%d" % (16 + d, 8 + 2 * d, 9 + 2 * d))
    a("buffer_store_dwordx2 v[16:17], v3, s[8:11], 0 offen")
    a("buffer_store_dwordx2 v[18:19], v4, s[8:11], 0 offen")
    a.label("L2_end")
    a("s_endpgm")
    for p in hazard.check(a.lines, "reduce"): print("HAZARD", p)
    return a.text()

def build(cfg):
    k1 = dict(name="gqa_main_kernel", grid=256, block=256, lds=160 * 1024, body=gen_main(cfg), vgpr=512, sgpr=96, accum=256)
    k2 = dict(name="gqa_reduce_kernel", grid=480, block=192, lds=0, body=gen_reduce(cfg), vgpr=80, sgpr=24, accum=80)
    return build_file([k1, k2])

if __name__ == "__main__":
    cfg = Cfg()
    out = sys.argv[1] if len(sys.argv) > 1 else "k.s"
    for kv in sys.argv[2:]:
        k, v = kv.split("=")
        old = getattr(cfg, k)
        setattr(cfg, k, (v == "1") if isinstance(old, bool) else type(old)(v))
    open(out, "w").write(build(cfg))
```

```python
import sys, math, struct
from asmgen import *
import hazard

def f32bits(x):
    return struct.unpack("<I", struct.pack("<f", x))[0]

class Cfg:
    stamps = False
    D = 6
    kv_flag = "nt"
    w_flag = ""
    st_flag = ""
    ld2_flag = ""
    BIAS = 7.0
    prof = False

SLOT = 32768
XB = 32768
QB = 88 * 1024
MB = 65536
INBOX = 23040
PART = 92160
STAMPOFF = 32 << 20
NSTAMP = 10

V_LANE, V_C, V_G = 1, 2, 3
V_DMA = 4
V_KA = 8
V_VA = 12
V_T = 20
V_E = 24
V_P = 32
V_S = 52
V_NM = 92
V_O = 112
V_X = 192
A_O = 0
A_L = 80
A_K = 100
A_V = 132
A_Q = 164
A_ONE = 244

def vr(b, n=4): return "v[%d:%d]" % (b, b + n - 1)
def ar(b, n=4): return "a[%d:%d]" % (b, b + n - 1)
def Otile(i, rt):
    return vr(V_O + (i * 5 + rt) * 4) if i < 4 else ar(A_O + ((i - 4) * 5 + rt) * 4)

MFMA = "v_mfma_f32_16x16x32_bf16"

class VM:
    def __init__(self, a): self.a = a; self.q = []
    def issue(self, tag): self.q.append(tag)
    def wait(self, tag):
        idx = max(i for i, t in enumerate(self.q) if t == tag)
        n = len(self.q) - 1 - idx
        if n > 63: n = 63
        self.a("s_waitcnt vmcnt(%d)" % n)
        self.q = self.q[len(self.q) - n:] if n else []
    def has(self, tag): return tag in self.q

def interleave(a, mf, fill, lead=0):
    tot = sum(c for _, c in fill)
    n = len(mf)
    acc = 0.0; k = 0
    for i, m in enumerate(mf):
        a(m)
        if i < lead: continue
        target = tot * (i + 1 - lead) / float(n - lead)
        while k < len(fill) and acc + fill[k][1] * 0.5 <= target:
            a(fill[k][0]); acc += fill[k][1]; k += 1
    while k < len(fill):
        a(fill[k][0]); k += 1

def gen_main(cfg):
    a = Asm()
    nst = [0]
    def stamp():
        if cfg.stamps:
            i = nst[0]; nst[0] += 1
            a("s_memrealtime s[%d:%d]" % (64 + 2 * i, 65 + 2 * i))
            a("s_waitcnt lgkmcnt(0)")
    a("s_cmp_ge_u32 s2, 256")
    a("s_cbranch_scc1 L_end")
    stamp()
    a.c("decode work item: xcd = wg&7, j = wg>>3, grp = xcd*4 + (j>>3), b = j&7, branch = grp>>4, hkv = grp&15")
    a("""
    s_and_b32 s3, s2, 7
    s_lshr_b32 s4, s2, 3
    s_lshr_b32 s5, s4, 3
    s_lshl_b32 s3, s3, 2
    s_add_u32 s3, s3, s5
    s_and_b32 s4, s4, 7
    s_and_b32 s5, s3, 15
    s_lshr_b32 s3, s3, 4
    s_mul_i32 s6, s3, 40
    s_add_u32 s8, s0, s6
    s_addc_u32 s9, s1, 0
    s_load_dwordx2 s[16:17], s[8:9], 0
    s_load_dwordx2 s[12:13], s[8:9], 8
    s_load_dwordx2 s[44:45], s[8:9], 16
    s_load_dwordx2 s[20:21], s[8:9], 24
    s_load_dwordx2 s[24:25], s[8:9], 32
    s_load_dwordx2 s[28:29], s[0:1], 96
    v_lshrrev_b32 v4, 6, v0
    v_and_b32 v1, 63, v0
    v_readfirstlane_b32 s6, v4
    v_and_b32 v2, 15, v0
    v_lshrrev_b32 v3, 4, v1
    s_lshr_b32 s7, s6, 1
    s_and_b32 s8, s6, 1
    """)
    a.c("s3=branch s4=b s5=hkv s6=wave s7=qh s8=kh")
    a("""
    v_mul_u32_u24 v20, 1152, v2
    v_lshl_add_u32 v20, v3, 4, v20
    s_waitcnt lgkmcnt(0)
    s_mul_i32 s9, s4, 92160
    s_add_u32 s16, s16, s9
    s_addc_u32 s17, s17, 0
    s_and_b32 s17, s17, 0xffff
    s_mov_b32 s18, 92160
    s_mov_b32 s19, 0x20000
    """)
    vm = VM(a)
    a.c("x -> LDS (fragment order), wave w loads k-steps w, w+4, ...")
    for i in range(5):
        a("s_add_u32 s10, s6, %d" % (4 * i))
        if i == 4: a("s_min_u32 s10, s10, 17")
        a("s_mul_i32 s11, s10, 5120")
        a("s_lshl_b32 s10, s10, 6")
        a("s_add_u32 m0, s11, %d" % XB)
        for rt in range(5):
            if rt == 4:
                a("s_add_u32 m0, s11, %d" % (XB + 4096))
                a("s_add_u32 s10, s10, %d" % (18432 - 1024 + 4096))
                a("buffer_load_dwordx4 v20, s[16:19], s10 offen %s lds" % cfg.w_flag)
            else:
                if rt: a("s_add_u32 s10, s10, %d" % (18432 - 1024))
                else: a("s_nop 0")
                a("buffer_load_dwordx4 v20, s[16:19], s10 offen offset:%d %s lds" % (rt * 1024, cfg.w_flag))
            vm.issue("x")
    a.c("wq SRD: base + (hkv*256 + wave*64)*2")
    a("""
    s_lshl_b32 s9, s5, 9
    s_lshl_b32 s10, s6, 7
    s_add_u32 s9, s9, s10
    s_add_u32 s20, s20, s9
    s_addc_u32 s21, s21, 0
    s_and_b32 s21, s21, 0xffff
    s_sub_u32 s22, %d, s9
    s_mov_b32 s23, 0x20000
    v_lshlrev_b32 v24, 16, v3
    v_lshl_add_u32 v24, v2, 3, v24
    """ % (576 * 8192))
    for j in range(1, 8):
        a("v_add_u32 v%d, %d, v24" % (24 + j, j * 8192))
    RAW = [32, 48, 64, 80, 96, 224, 240][:cfg.D]
    def wq_issue(ks):
        base = RAW[ks % cfg.D]
        out = ["s_mov_b32 s10, %d" % (ks * 262144)]
        for j in range(8):
            out.append("buffer_load_dwordx2 %s, v%d, s[20:23], s10 offen %s" % (vr(base + 2 * j, 2), 24 + j, cfg.w_flag))
        return out
    NPRE = 4
    for ks in range(NPRE):
        for l in wq_issue(ks): a(l)
        for j in range(8): vm.issue("wq%d" % ks)
    a.c("K/V DMA SRD (waves 0,1: K ; waves 2,3: V)")
    a("""
    s_cmp_eq_u32 s7, 0
    s_cselect_b32 s12, s12, s44
    s_cselect_b32 s13, s13, s45
    s_lshl_b32 s9, s4, 4
    s_add_u32 s9, s9, s5
    s_lshl_b32 s9, s9, 18
    s_add_u32 s12, s12, s9
    s_addc_u32 s13, s13, 0
    s_and_b32 s13, s13, 0xffff
    s_mov_b32 s14, 262144
    s_mov_b32 s15, 0x20000
    v_lshlrev_b32 v21, s7, v3
    v_xor_b32 v21, v21, v2
    s_cmp_eq_u32 s7, 0
    s_cselect_b32 s9, 4, 8
    s_cselect_b32 s10, 8, 0
    s_cselect_b32 s11, 12, 8
    v_lshlrev_b32 v22, 8, v3
    v_lshl_add_u32 v4, v21, 4, v22
    v_xor_b32 v23, s9, v21
    v_lshl_add_u32 v5, v23, 4, v22
    v_xor_b32 v23, s10, v21
    v_lshl_add_u32 v6, v23, 4, v22
    v_xor_b32 v23, s11, v21
    v_lshl_add_u32 v7, v23, 4, v22
    s_lshl_b32 s32, s8, 13
    s_lshl_b32 s33, s6, 13
    """)
    a.c("s32 = global offset of next K/V stage for this wave, s33 = wave*8192")
    def kv_issue_static(stage):
        slot = (stage + 4) % 5
        out = []
        for h in range(2):
            out.append("s_add_u32 m0, s33, %d" % (slot * SLOT + h * 4096))
            out.append("s_add_u32 s10, s32, %d" % (stage * 16384 + h * 4096))
            for j in range(4):
                out.append("buffer_load_dwordx4 v%d, s[12:15], s10 offen offset:%d %s lds" % (V_DMA + j, j * 1024, cfg.kv_flag))
        return out
    for l in kv_issue_static(0): a(l)
    for j in range(8): vm.issue("kv0")
    a.c("wo / ws SRDs")
    a("""
    s_mul_i32 s9, s5, 294912
    s_add_u32 s24, s24, s9
    s_addc_u32 s25, s25, 0
    s_and_b32 s25, s25, 0xffff
    s_mov_b32 s26, 294912
    s_mov_b32 s27, 0x20000
    s_mov_b32 s46, s28
    s_and_b32 s47, s29, 0xffff
    s_lshl_b32 s9, s3, 3
    s_add_u32 s9, s9, s4
    s_lshl_b32 s9, s9, 4
    s_add_u32 s9, s9, s5
    s_mul_i32 s9, s9, %d
    s_add_u32 s28, s28, s9
    s_addc_u32 s29, s29, 0
    s_and_b32 s29, s29, 0xffff
    s_mov_b32 s30, %d
    s_mov_b32 s31, 0x20000
    s_mov_b32 s36, 0x05040100
    s_mov_b32 s37, 0x07060302
    s_mov_b32 s38, 0x40004000
    s_mov_b32 s40, 0x%08x
    s_mov_b32 s41, 0x%08x
    """ % (PART, PART, f32bits(math.log2(math.e) / math.sqrt(128.0)), f32bits(math.log2(math.e) / math.sqrt(128.0))))
    a.c("K read addresses (slot 4 = stage 0)")
    a("""
    v_lshlrev_b32 v21, 1, v3
    v_xor_b32 v21, v21, v2
    s_lshl_b32 s9, s8, 13
    s_add_u32 s9, s9, %d
    v_lshlrev_b32 v22, 8, v2
    v_add_u32 v22, s9, v22
    """ % (4 * SLOT))
    for ks in range(4):
        kc = 8 * (ks >> 1) + (ks & 1)
        a("v_xor_b32 v23, %d, v21" % kc)
        a("v_lshl_add_u32 v%d, v23, 4, v22" % (V_KA + ks))
    a.c("V read addresses")
    a("""
    v_lshrrev_b32 v21, 2, v2
    v_lshl_add_u32 v22, v3, 2, v21
    v_and_b32 v21, 7, v22
    v_lshlrev_b32 v22, 8, v22
    v_and_b32 v23, 3, v2
    v_lshl_add_u32 v22, v23, 3, v22
    s_add_u32 s9, s9, 16384
    v_add_u32 v22, s9, v22
    s_lshl_b32 s10, s8, 2
    v_xor_b32 v21, s10, v21
    """)
    for i in range(8):
        a("v_xor_b32 v23, %d, v21" % i)
        a("v_lshl_add_u32 v%d, v23, 5, v22" % (V_VA + i))
    a("s_mov_b32 s9, 0x3f803f80")
    for i in range(4): a("v_accvgpr_write_b32 a%d, s9" % (A_ONE + i))
    a("v_lshlrev_b32 v20, 4, v1")
    a("v_add_u32 v21, %d, v20" % (XB + 45 * 1024))
    a("v_add_u32 v20, %d, v20" % XB)
    for ks in range(NPRE, cfg.D):
        for l in wq_issue(ks): a(l)
        for j in range(8): vm.issue("wq%d" % ks)
    vm.wait("x")
    a("s_barrier")
    stamp()
    XF = [100, 120]
    WF = [192, 208]
    def x_reads(ks):
        out = []
        for rt in range(5):
            n = ks * 5 + rt
            reg, off = (20, n * 1024) if n < 45 else (21, (n - 45) * 1024)
            out.append(("ds_read_b128 %s, v%d offset:%d" % (ar(XF[ks & 1] + rt * 4), reg, off), 4))
        return out
    def perms(ks):
        base = RAW[ks % cfg.D]; out = []
        for i in range(4):
            for t in range(4):
                lo = base + 2 * (2 * t) + (i >> 1); hi = base + 2 * (2 * t + 1) + (i >> 1)
                out.append(("v_perm_b32 v%d, v%d, v%d, s%d" % (WF[ks & 1] + i * 4 + t, hi, lo, 36 + (i & 1)), 4))
        return out
    for l, _ in x_reads(0): a(l)
    vm.wait("wq0")
    for l, _ in perms(0): a(l)
    for ks in range(18):
        fill = []
        if ks + 1 < 18:
            fill += x_reads(ks + 1)
        pre = []
        if ks + cfg.D < 18:
            pre = [(l, 6) for l in wq_issue(ks + cfg.D)]
        if ks == 0:
            pre += [(l, 6) for l in kv_issue_static(1)]
        mf = []
        for rt in range(5):
            for i in range(4):
                acc = vr(V_O + (i * 5 + rt) * 4)
                mf.append("%s %s, %s, %s, %s" % (MFMA, acc, vr(WF[ks & 1] + i * 4), ar(XF[ks & 1] + rt * 4), "0" if ks == 0 else acc))
        a("s_waitcnt lgkmcnt(0)")
        a("s_nop 0")
        interleave(a, mf[:8], pre + fill)
        if ks + cfg.D < 18:
            for j in range(8): vm.issue("wq%d" % (ks + cfg.D))
        if ks == 0:
            for j in range(8): vm.issue("kv1")
        if ks + 1 < 18:
            vm.wait("wq%d" % (ks + 1))
            interleave(a, mf[8:], perms(ks + 1))
        else:
            interleave(a, mf[8:], [])
    stamp()
    a("s_barrier")
    for l in kv_issue_static(2): a(l)
    for j in range(8): vm.issue("kv2")
    a.c("scale, convert, exchange Q")
    a("""
    s_mul_i32 s9, s7, 20480
    s_add_u32 s9, s9, %d
    v_lshlrev_b32 v20, 4, v1
    v_add_u32 v20, s9, v20
    s_lshl_b32 s10, s8, 11
    v_add_u32 v21, s10, v20
    """ % QB)
    for rt in range(5):
        for i in range(4):
            b = V_O + (i * 5 + rt) * 4
            a("v_pk_mul_f32 %s, %s, s[40:41]" % (vr(b, 2), vr(b, 2)))
            a("v_pk_mul_f32 %s, %s, s[40:41]" % (vr(b + 2, 2), vr(b + 2, 2)))
        for u in range(2):
            d = 32 + (rt * 2 + u) * 4
            for t in range(4):
                r = 2 * u + (t >> 1); i = 2 * (t & 1)
                a("v_cvt_pk_bf16_f32 v%d, v%d, v%d" % (d + t, V_O + (i * 5 + rt) * 4 + r, V_O + ((i + 1) * 5 + rt) * 4 + r))
            a("ds_write_b128 v21, %s offset:%d" % (vr(d), (rt * 4 + u) * 1024))
    a("s_waitcnt lgkmcnt(0)")
    a("s_barrier")
    for rt in range(5):
        for ks in range(4):
            a("ds_read_b128 %s, v20 offset:%d" % (ar(A_Q + (rt * 4 + ks) * 4), (rt * 4 + ks) * 1024))
    for i in range(20): a("v_mov_b32 v%d, 0" % (V_NM + i))
    a("s_waitcnt lgkmcnt(0)")
    a("s_barrier")
    for st in (3, 4):
        for l in kv_issue_static(st): a(l)
    a("""
    v_lshrrev_b32 v21, 3, v1
    v_mul_u32_u24 v23, 1152, v21
    v_and_b32 v21, 6, v21
    v_and_b32 v22, 7, v1
    v_xor_b32 v21, v21, v22
    v_lshl_add_u32 v23, v21, 4, v23
    s_add_u32 s32, s32, %d
    s_mov_b32 s34, 0
    s_mov_b32 s39, -1
    s_mov_b32 s42, 0xff800000
    s_mov_b32 s44, %d
    s_mov_b32 s43, 0
    s_mul_i32 s35, s6, %d
    """ % (5 * 16384, 4 * SLOT, 8 * 9216))
    a.c("s34=stage s39=force-slow compare value s42=delta floor s44=LDS offset of current slot s43=LDS offset of previous stage's slot s35=wo row offset of wave")
    stamp()
    def prof(i):
        if cfg.prof:
            a("s_memtime s[56:57]")
            a("s_waitcnt lgkmcnt(0)")
            a("s_sub_u32 s58, s56, s59")
            a("s_add_u32 s%d, s%d, s58" % (84 + i, 84 + i))
            a("s_mov_b32 s59, s56")
    if cfg.prof:
        for i in range(8): a("s_mov_b32 s%d, 0" % (84 + i))
        a("s_memtime s[56:57]")
        a("s_waitcnt lgkmcnt(0)")
        a("s_mov_b32 s59, s56")
    loop_start = len(a.lines)
    a.label("L_loop")
    a("s_cmp_eq_u32 s34, 15")
    a("s_cbranch_scc1 L_w16")
    a("s_waitcnt vmcnt(24)")
    a.label("L_wdone")
    prof(0)
    a("s_barrier")
    prof(1)
    for ks in range(4):
        for kt in range(2):
            a("ds_read_b128 %s, v%d offset:%d" % (ar(A_K + (kt * 4 + ks) * 4), V_KA + ks, kt * 4096))
    a.c("DMA issue: stage s+4 into the slot of stage s-1")
    a("s_cmp_eq_u32 s34, 0")
    a("s_cbranch_scc1 L_dma_done")
    a("s_add_u32 s9, s33, s43")
    a("s_cmp_ge_u32 s34, 12")
    a("s_cbranch_scc1 L_dma_wo")
    for h in range(2):
        a("s_add_u32 m0, s9, %d" % (h * 4096))
        a("s_add_u32 s10, s32, %d" % (h * 4096))
        for j in range(4):
            a("buffer_load_dwordx4 v%d, s[12:15], s10 offen offset:%d %s lds" % (V_DMA + j, j * 1024, cfg.kv_flag))
    a("s_add_u32 s32, s32, 16384")
    a.label("L_dma_done")
    vreads = []
    for i in range(8):
        for h in range(2):
            vreads.append(("ds_read_b64_tr_b16 %s, v%d offset:%d" % (ar(A_V + i * 4 + 2 * h, 2), V_VA + i, h * 4096), 4))
    def QK(rt):
        out = []
        for ks in range(4):
            for kt in range(2):
                s = vr(V_S + rt * 8 + kt * 4)
                out.append("%s %s, %s, %s, %s" % (MFMA, s, ar(A_K + (kt * 4 + ks) * 4), ar(A_Q + (rt * 4 + ks) * 4),
                                                   vr(V_NM + rt * 4) if ks == 0 else s))
        return out
    def PV(rt):
        out = []
        for i in range(8):
            out.append("%s %s, %s, %s, %s" % (MFMA, Otile(i, rt), ar(A_V + i * 4), vr(V_P + rt * 4), Otile(i, rt)))
        out.append("%s %s, %s, %s, %s" % (MFMA, ar(A_L + rt * 4), ar(A_ONE), vr(V_P + rt * 4), ar(A_L + rt * 4)))
        return out
    def SM(rt):
        out = []
        for t in range(4):
            out.append(("v_exp_f32 v%d, v%d" % (V_E + 2 * t, V_S + rt * 8 + 2 * t), 8))
            out.append(("v_exp_f32 v%d, v%d" % (V_E + 2 * t + 1, V_S + rt * 8 + 2 * t + 1), 8))
            if t > 0:
                out.append(("v_cvt_pk_bf16_f32 v%d, v%d, v%d" % (V_P + rt * 4 + t - 1, V_E + 2 * t - 2, V_E + 2 * t - 1), 4))
        p = V_P + rt * 4
        out.append(("v_or3_b32 v%d, v%d, v%d, v%d" % (V_T, p, p + 1, p + 2), 4))
        out.append(("v_cvt_pk_bf16_f32 v%d, v%d, v%d" % (p + 3, V_E + 6, V_E + 7), 4))
        out.append(("v_bitop3_b32 v%d, v%d, v%d, s38 bitop3:0xa8" % (V_T, V_T, p + 3), 4))
        out.append(("v_cmp_ne_u32 vcc, s39, v%d" % V_T, 4))
        return out
    def CHECK(rt):
        a("s_cbranch_vccnz L_slow%d" % rt)
        a.label("L_back%d" % rt)
    adv = [("v_add_u32 v%d, s11, v%d" % (r, r), 4) for r in list(range(V_KA, V_KA + 4)) + list(range(V_VA, V_VA + 8))]
    a("s_waitcnt lgkmcnt(0)")
    prof(2)
    interleave(a, QK(0), vreads)
    slotadv = [("s_mov_b32 s43, s44", 4), ("s_add_u32 s44, s44, %d" % SLOT, 4), ("s_cmp_eq_u32 s44, %d" % (5 * SLOT), 4),
               ("s_cselect_b32 s44, 0, s44", 4), ("s_sub_u32 s11, s44, s43", 4)]
    q1 = QK(1)
    interleave(a, q1[:4], slotadv)
    interleave(a, q1[4:], SM(0))
    CHECK(0)
    a("s_waitcnt lgkmcnt(0)")
    prof(3)
    interleave(a, QK(2) + PV(0), SM(1), lead=2)
    CHECK(1)
    interleave(a, QK(3) + PV(1), SM(2))
    CHECK(2)
    interleave(a, QK(4) + PV(2), SM(3))
    CHECK(3)
    prof(4)
    interleave(a, PV(3), SM(4))
    CHECK(4)
    interleave(a, PV(4), adv)
    prof(5)
    if cfg.prof:
        a("s_cmp_eq_u32 s34, 0")
        a("s_cbranch_scc0 L_pk")
        for i in range(8): a("s_mov_b32 s%d, 0" % (84 + i))
        a.label("L_pk")
    a("s_mov_b32 s39, 0")
    a("s_mov_b32 s42, 0")
    a("s_add_u32 s34, s34, 1")
    a("s_cmp_lt_u32 s34, 16")
    a("s_cbranch_scc1 L_loop")
    loop_end = len(a.lines)
    stamp()
    a.c("merge")
    a("""
    s_xor_b32 s9, s6, 1
    s_mul_i32 s9, s9, %d
    s_add_u32 s9, s9, %d
    s_mul_i32 s10, s6, %d
    s_add_u32 s10, s10, %d
    v_lshlrev_b32 v20, 4, v1
    v_add_u32 v21, s10, v20
    v_add_u32 v20, s9, v20
    v_lshlrev_b32 v22, 2, v1
    v_add_u32 v24, s10, v22
    v_add_u32 v22, s9, v22
    s_barrier
    """ % (INBOX, MB, INBOX, MB))
    a.c("v20: partner inbox (b128) v22: partner inbox (b32) v21: own inbox (b128) v24: own inbox (b32)")
    for rt in range(5):
        a("ds_write_b32 v22, v%d offset:%d" % (V_NM + rt * 4, 20480 + rt * 256))
        a("ds_write_b32 v22, a%d offset:%d" % (A_L + rt * 4, 20480 + (5 + rt) * 256))
    for rt in range(5):
        for i in range(4):
            a("ds_write_b128 v20, %s offset:%d" % (Otile(4 + i, rt), (rt * 4 + i) * 1024))
    for rt in range(5):
        a("v_accvgpr_read_b32 v%d, a%d" % (V_NM + rt * 4 + 1, A_L + rt * 4))
    a("s_waitcnt vmcnt(0) lgkmcnt(0)")
    a("s_barrier")
    for rt in range(5):
        a("ds_read_b32 v%d, v24 offset:%d" % (52 + rt, 20480 + rt * 256))
        a("ds_read_b32 v%d, v24 offset:%d" % (57 + rt, 20480 + (5 + rt) * 256))
    def IN(rt, i):
        n = rt * 4 + i
        return (V_X + n * 4) if n < 16 else (32 + (n - 16) * 4)
    inreads = ["ds_read_b128 %s, v21 offset:%d" % (vr(IN(rt, i)), (rt * 4 + i) * 1024) for rt in range(5) for i in range(4)]
    for l in inreads[:4]: a(l)
    a("""
    v_lshrrev_b32 v26, 2, v2
    v_and_b32 v27, 1, v3
    v_lshl_add_u32 v26, v27, 2, v26
    v_lshrrev_b32 v27, 1, v26
    v_xor_b32 v27, s6, v27
    v_lshlrev_b32 v25, 7, v26
    v_lshl_add_u32 v25, v27, 5, v25
    v_and_b32 v27, 3, v2
    v_lshl_add_u32 v25, v27, 3, v25
    v_lshrrev_b32 v27, 1, v3
    v_lshl_add_u32 v25, v27, 10, v25
    v_add_u32 v26, 0x10000, v25
    v_add_u32 v27, 0x20000, v25
    s_waitcnt lgkmcnt(4)
    """)
    for l in inreads[4:]: a(l)
    for rt in range(5):
        nm = V_NM + rt * 4
        a("v_min_f32 v%d, v%d, v%d" % (nm + 2, nm, 52 + rt))
        a("v_sub_f32 v%d, v%d, v%d" % (nm, nm + 2, nm))
        a("v_sub_f32 v%d, v%d, v%d" % (52 + rt, nm + 2, 52 + rt))
    for rt in range(5):
        nm = V_NM + rt * 4
        a("v_exp_f32 v%d, v%d" % (nm, nm))
        a("v_exp_f32 v%d, v%d" % (52 + rt, 52 + rt))
    for rt in range(5):
        nm = V_NM + rt * 4
        a("v_mul_f32 v%d, v%d, v%d" % (nm + 1, nm, nm + 1))
        a("v_fmac_f32 v%d, v%d, v%d" % (nm + 1, 52 + rt, 57 + rt))
    for rt in range(5):
        nm = V_NM + rt * 4
        a("v_rcp_f32 v%d, v%d" % (nm + 1, nm + 1))
    for rt in range(5):
        nm = V_NM + rt * 4
        a("v_mul_f32 v%d, v%d, v%d" % (64 + 2 * rt, nm, nm + 1))
        a("v_mul_f32 v%d, v%d, v%d" % (74 + 2 * rt, 52 + rt, nm + 1))
    a("s_waitcnt lgkmcnt(0)")
    for rt in range(5):
        for i in range(4):
            o = V_O + (i * 5 + rt) * 4
            for h in range(2):
                a("v_pk_mul_f32 %s, %s, %s op_sel_hi:[1,0]" % (vr(o + 2 * h, 2), vr(o + 2 * h, 2), vr(64 + 2 * rt, 2)))
                a("v_pk_fma_f32 %s, %s, %s, %s op_sel_hi:[1,0,1]" % (vr(o + 2 * h, 2), vr(IN(rt, i) + 2 * h, 2), vr(74 + 2 * rt, 2), vr(o + 2 * h, 2)))
        for e in range(2):
            d = 84 + e * 4
            for t in range(4):
                o = V_O + ((2 * e + (t >> 1)) * 5 + rt) * 4 + 2 * (t & 1)
                a("v_cvt_pk_bf16_f32 v%d, v%d, v%d" % (d + t, o, o + 1))
            a("ds_write_b128 v21, %s offset:%d" % (vr(d), (e * 5 + rt) * 1024))
    a("v_lshlrev_b32 v20, 4, v1")
    a("v_add_u32 v21, %d, v20" % (MB + 2 * INBOX))
    a("v_add_u32 v20, %d, v20" % MB)
    a("s_waitcnt lgkmcnt(0)")
    a("s_barrier")
    stamp()
    A_OF = 0
    A_WF = [160, 192]
    V_ACC = [32, 52]
    V_ST = [72, 84]
    def wf_reads(cg):
        slot = cg % 5
        reg, off = 25 + (slot >> 1), (slot & 1) * SLOT
        out = []
        for kk in range(8):
            for h in range(2):
                out.append(("ds_read_b64_tr_b16 %s, v%d offset:%d" % (ar(A_WF[cg & 1] + kk * 4 + 2 * h, 2), reg, off + kk * 4096 + h * 2048), 4))
        return out
    def wo_issue(cg):
        slot = cg % 5
        out = []
        for h in range(2):
            out.append(("s_add_u32 m0, s33, %d" % (slot * SLOT + h * 4096), 4))
            for j in range(4):
                out.append(("s_add_u32 s10, s35, %d\nbuffer_load_dwordx4 v23, s[24:27], s10 offen offset:%d %s lds" % (
                    cg * 128 + (h * 4 + j) * 9216 - j * 1024, j * 1024, cfg.w_flag), 12))
        return out
    for l, _ in wf_reads(0): a(l)
    for kk in range(8):
        for rt in range(5):
            w = kk >> 1
            reg, off = (20, w * INBOX) if w < 2 else (21, (w - 2) * INBOX)
            a("ds_read_b128 %s, v%d offset:%d" % (ar(A_OF + (kk * 5 + rt) * 4), reg, off + ((kk & 1) * 5 + rt) * 1024))
    a("""
    s_mul_i32 s9, s6, 2560
    v_lshlrev_b32 v28, 4, v1
    v_add_u32 v28, s9, v28
    v_lshlrev_b32 v29, 3, v1
    v_add_u32 v29, s9, v29
    s_waitcnt lgkmcnt(0)
    s_barrier
    """)
    vm = VM(a)
    for cg in (2, 3, 4, 5):
        for l, _ in wo_issue(cg): a(l)
        for j in range(8): vm.issue("wo%d" % cg)
    def stores(cg):
        acc = V_ACC[cg & 1]; st = V_ST[cg & 1]
        out = []
        for rt in range(5):
            out.append(("v_cvt_pk_bf16_f32 v%d, v%d, v%d" % (st + 2 * rt, acc + rt * 4, acc + rt * 4 + 1), 4))
            out.append(("v_cvt_pk_bf16_f32 v%d, v%d, v%d" % (st + 2 * rt + 1, acc + rt * 4 + 2, acc + rt * 4 + 3), 4))
        out.append(("s_mov_b32 s11, %d" % (cg * 10240), 4))
        out.append(("buffer_store_dwordx4 %s, v28, s[28:31], s11 offen %s" % (vr(st), cfg.st_flag), 8))
        out.append(("buffer_store_dwordx4 %s, v28, s[28:31], s11 offen offset:1024 %s" % (vr(st + 4), cfg.st_flag), 8))
        out.append(("buffer_store_dwordx2 %s, v29, s[28:31], s11 offen offset:2048 %s" % (vr(st + 8, 2), cfg.st_flag), 8))
        return out
    for cg in range(9):
        mf = []
        for kk in range(8):
            for rt in range(5):
                acc = vr(V_ACC[cg & 1] + rt * 4)
                mf.append("%s %s, %s, %s, %s" % (MFMA, acc, ar(A_WF[cg & 1] + kk * 4), ar(A_OF + (kk * 5 + rt) * 4), "0" if kk == 0 else acc))
        fill = []
        if cg > 0:
            a("s_waitcnt lgkmcnt(0)")
        if cg + 1 < 9:
            if vm.has("wo%d" % (cg + 1)): vm.wait("wo%d" % (cg + 1))
            if cg > 0: a("s_barrier")
            fill += wf_reads(cg + 1)
            if cg > 0 and cg + 4 < 9:
                pass
        dma = []
        if cg + 5 < 9 and cg > 0:
            dma = wo_issue(cg + 5)
        elif cg == 0 and False:
            pass
        st = stores(cg - 1) if cg > 0 else []
        interleave(a, mf, fill + st + dma, lead=1)
        for _ in range(3 if cg > 0 else 0): vm.issue("st")
        if dma:
            for j in range(8): vm.issue("wo%d" % (cg + 5))
        if cg == 0:
            pass
    a("s_nop 7")
    for l, _ in stores(8): a(l)
    stamp()
    if cfg.stamps:
        a("s_waitcnt vmcnt(0)")
        stamp()
        a("s_mov_b32 s44, s46")
        a("s_mov_b32 s45, s47")
        a("s_mov_b32 s46, 0x10000000")
        a("s_mov_b32 s47, 0x20000")
        a("s_mul_i32 s9, s2, %d" % (NSTAMP * 8))
        a("s_add_u32 s9, s9, %d" % STAMPOFF)
        a("v_mov_b32 v4, s9")
        a("v_cmp_eq_u32 vcc, 0, v0")
        a("s_and_saveexec_b64 s[10:11], vcc")
        a("s_cbranch_execz L_end")
        if cfg.prof:
            a("s_load_dwordx2 s[48:49], s[0:1], 88")
            a("s_waitcnt lgkmcnt(0)")
            a("s_and_b32 s49, s49, 0xffff")
            a("s_mov_b32 s50, 256")
            a("s_mov_b32 s51, 0x20000")
            a("s_cmp_eq_u32 s2, 77")
            a("s_cbranch_scc0 L_nop")
            a("v_mov_b32 v8, 0")
            for i in range(8):
                a("v_mov_b32 v6, s%d" % (84 + i))
                a("buffer_store_dword v6, v8, s[48:51], 0 offen offset:%d" % (i * 4))
            a.label("L_nop")
        for i in range(NSTAMP):
            k = min(i, nst[0] - 1)
            a("v_mov_b32 v6, s%d" % (64 + 2 * k))
            a("v_mov_b32 v7, s%d" % (65 + 2 * k))
            a("buffer_store_dwordx2 v[6:7], v4, s[44:47], 0 offen offset:%d" % (i * 8))
    a.label("L_end")
    a("s_endpgm")
    main_end = len(a.lines)
    a.label("L_w16")
    a("s_waitcnt vmcnt(16)")
    a("s_branch L_wdone")
    a.label("L_dma_wo")
    a("s_cmp_ge_u32 s34, 14")
    a("s_cbranch_scc1 L_dma_done")
    a("s_sub_u32 s11, s34, 12")
    a("s_lshl_b32 s11, s11, 7")
    a("s_add_u32 s11, s11, s35")
    for h in range(2):
        a("s_add_u32 m0, s9, %d" % (h * 4096))
        for j in range(4):
            a("s_add_u32 s10, s11, %d" % ((h * 4 + j) * 9216 - j * 1024))
            a("buffer_load_dwordx4 v23, s[24:27], s10 offen offset:%d %s lds" % (j * 1024, cfg.w_flag))
    a("s_branch L_dma_done")
    slow = []
    for rt in range(5):
        b0 = len(a.lines)
        a.label("L_slow%d" % rt)
        S = V_S + rt * 8
        a("s_nop 7")
        a("v_max3_f32 v20, v%d, v%d, v%d" % (S, S + 1, S + 2))
        a("v_max3_f32 v20, v20, v%d, v%d" % (S + 3, S + 4))
        a("v_max3_f32 v20, v20, v%d, v%d" % (S + 5, S + 6))
        a("v_max_f32 v20, v20, v%d" % (S + 7))
        a("v_mov_b32 v21, v20")
        a("s_nop 1")
        a("v_permlane32_swap_b32 v20, v21")
        a("v_max_f32 v20, v20, v21")
        a("v_mov_b32 v21, v20")
        a("s_nop 1")
        a("v_permlane16_swap_b32 v20, v21")
        a("v_max_f32 v20, v20, v21")
        a("v_add_f32 v20, 0x%08x, v20" % f32bits(cfg.BIAS))
        a("v_max_f32 v20, s42, v20")
        a.c("v20 = delta")
        for r in range(4):
            a("v_sub_f32 v%d, v%d, v20" % (V_NM + rt * 4 + r, V_NM + rt * 4 + r))
        for t in range(8):
            a("v_sub_f32 v%d, v%d, v20" % (V_E + t, S + t))
        for t in range(8):
            a("v_exp_f32 v%d, v%d" % (V_E + t, V_E + t))
        a("v_exp_f32 v21, -v20")
        for t in range(4):
            a("v_cvt_pk_bf16_f32 v%d, v%d, v%d" % (V_P + rt * 4 + t, V_E + 2 * t, V_E + 2 * t + 1))
        a("s_cmp_eq_u32 s34, 0")
        a("s_cbranch_scc1 L_init%d" % rt)
        regs_v = [V_O + (i * 5 + rt) * 4 + r for i in range(4) for r in range(4)]
        regs_a = [A_O + (i * 5 + rt) * 4 + r for i in range(4) for r in range(4)] + [A_L + rt * 4 + r for r in range(4)]
        for r in regs_v: a("v_mul_f32 v%d, v%d, v21" % (r, r))
        for k in range(0, 20, 4):
            for q in range(4): a("v_accvgpr_read_b32 v%d, a%d" % (V_E + q, regs_a[k + q]))
            for q in range(4): a("v_mul_f32 v%d, v%d, v21" % (V_E + q, V_E + q))
            for q in range(4): a("v_accvgpr_write_b32 a%d, v%d" % (regs_a[k + q], V_E + q))
        a("s_nop 1")
        a("s_branch L_back%d" % rt)
        a.label("L_init%d" % rt)
        for r in regs_v[::2]: a("v_mov_b64 %s, 0" % vr(r, 2))
        for r in regs_a: a("v_accvgpr_write_b32 a%d, 0" % r)
        a("s_nop 1")
        a("s_branch L_back%d" % rt)
    L = a.lines
    probs = hazard.check(L[:loop_end] + L[loop_start:main_end], "main") + hazard.check(L[main_end:], "ool")
    for p in probs: print("HAZARD", p)
    return a.text()

def gen_reduce(cfg):
    a = Asm()
    a("""
    s_cmp_ge_u32 s2, 480
    s_cbranch_scc1 L2_end
    s_load_dwordx2 s[4:5], s[0:1], 96
    s_load_dwordx2 s[8:9], s[0:1], 80
    s_mul_i32 s3, s2, 2185
    s_lshr_b32 s3, s3, 16
    s_mul_i32 s12, s3, 30
    s_sub_u32 s12, s2, s12
    s_mul_i32 s12, s12, 192
    v_add_u32 v1, s12, v0
    v_lshlrev_b32 v2, 4, v1
    s_mul_i32 s13, s3, %d
    s_waitcnt lgkmcnt(0)
    s_add_u32 s4, s4, s13
    s_addc_u32 s5, s5, 0
    s_and_b32 s5, s5, 0xffff
    s_mov_b32 s6, %d
    s_mov_b32 s7, 0x20000
    """ % (16 * PART, 16 * PART))
    for h in range(16):
        a("s_mov_b32 s14, %d" % (h * PART))
        a("buffer_load_dwordx4 %s, v2, s[4:7], s14 offen %s" % (vr(16 + 4 * h), cfg.ld2_flag))
    a("""
    s_and_b32 s9, s9, 0xffff
    s_mov_b32 s10, %d
    s_mov_b32 s11, 0x20000
    v_mul_u32_u24 v3, 52429, v1
    v_lshrrev_b32 v3, 23, v3
    v_mul_u32_u24 v4, 160, v3
    v_sub_u32 v4, v1, v4
    v_lshlrev_b32 v3, 5, v3
    v_cmp_gt_u32 vcc, 128, v4
    v_and_b32 v5, 63, v4
    v_lshrrev_b32 v6, 6, v4
    v_lshlrev_b32 v6, 5, v6
    v_lshlrev_b32 v7, 1, v5
    v_cndmask_b32 v5, v7, v5, vcc
    v_and_b32 v7, 15, v5
    v_add_u32 v6, v6, v7
    v_lshrrev_b32 v5, 4, v5
    v_lshl_add_u32 v3, v5, 3, v3
    v_mul_u32_u24 v6, 2304, v6
    v_add_u32 v3, v3, v6
    v_mov_b32 v7, 2304
    v_mov_b32 v8, %d
    v_cndmask_b32 v7, v7, v8, vcc
    s_and_b32 s13, s3, 7
    s_mul_i32 s13, s13, %d
    s_lshr_b32 s14, s3, 3
    s_mul_i32 s14, s14, 1152
    s_add_u32 s13, s13, s14
    v_add_u32 v3, s13, v3
    v_add_u32 v4, v3, v7
    """ % (8 * 80 * 1152 * 2, 16 * 2304, 80 * 2304))
    for h in range(16):
        a("s_waitcnt vmcnt(%d)" % (15 - h))
        for d in range(4):
            r = 16 + 4 * h + d
            if h == 0:
                a("v_lshlrev_b32 v%d, 16, v%d" % (8 + 2 * d, r))
                a("v_and_b32 v%d, 0xffff0000, v%d" % (9 + 2 * d, r))
            else:
                a("v_lshlrev_b32 v5, 16, v%d" % r)
                a("v_and_b32 v6, 0xffff0000, v%d" % r)
                a("v_add_f32 v%d, v%d, v5" % (8 + 2 * d, 8 + 2 * d))
                a("v_add_f32 v%d, v%d, v6" % (9 + 2 * d, 9 + 2 * d))
    for d in range(4):
        a("v_cvt_pk_bf16_f32 v%d, v%d, v%d" % (16 + d, 8 + 2 * d, 9 + 2 * d))
    a("buffer_store_dwordx2 v[16:17], v3, s[8:11], 0 offen")
    a("buffer_store_dwordx2 v[18:19], v4, s[8:11], 0 offen")
    a.label("L2_end")
    a("s_endpgm")
    for p in hazard.check(a.lines, "reduce"): print("HAZARD", p)
    return a.text()

def build(cfg):
    k1 = dict(name="gqa_main_kernel", grid=256, block=256, lds=160 * 1024, body=gen_main(cfg), vgpr=512, sgpr=96, accum=256)
    k2 = dict(name="gqa_reduce_kernel", grid=480, block=192, lds=0, body=gen_reduce(cfg), vgpr=80, sgpr=24, accum=80)
    return build_file([k1, k2])

if __name__ == "__main__":
    cfg = Cfg()
    out = sys.argv[1] if len(sys.argv) > 1 else "k.s"
    for kv in sys.argv[2:]:
        k, v = kv.split("=")
        old = getattr(cfg, k)
        setattr(cfg, k, (v == "1") if isinstance(old, bool) else type(old)(v))
    open(out, "w").write(build(cfg))
```

```python
import sys, math, struct
from asmgen import *
import hazard

def f32bits(x):
    return struct.unpack("<I", struct.pack("<f", x))[0]

class Cfg:
    stamps = False
    cyc = False
    kv_flag = "nt"
    w_flag = "nt"
    wo_flag = ""
    st_flag = "sc1"
    ld2_flag = "sc1"
    BIAS = 7.0
    rot = True
    fuse = True
    codepf = True
    spin = 20000
    strip = ""

SLOT = 32768
MB = 65536
INBOX = 23040
PART = 92160
STAMPOFF = 32 << 20
NSTAMP = 16

V_DMA = 4
V_KA = 8
V_VA = 12
V_T = 20
V_E = 24
V_P = 32
V_S = 52
V_NM = 92
V_O = 112
V_X = 192
A_O = 0
A_L = 80
A_K = 100
A_V = 132
A_Q = 164
A_ONE = 244

def vr(b, n=4): return "v[%d:%d]" % (b, b + n - 1)
def ar(b, n=4): return "a[%d:%d]" % (b, b + n - 1)
def Otile(i, rt):
    return vr(V_O + (i * 5 + rt) * 4) if i < 4 else ar(A_O + ((i - 4) * 5 + rt) * 4)
def slot_of(stage): return 2 + stage % 3

MFMA = "v_mfma_f32_16x16x32_bf16"

class VM:
    def __init__(self, a): self.a = a; self.q = []
    def issue(self, tag, n=1): self.q += [tag] * n
    def count(self, tags):
        idx = max([i for i, t in enumerate(self.q) if t in tags] + [-1])
        return len(self.q) - 1 - idx if idx >= 0 else None
    def wait(self, *tags):
        n = self.count(tags)
        if n is None: return
        n = min(n, 63)
        self.a("s_waitcnt vmcnt(%d)" % n)
        self.q = self.q[len(self.q) - n:] if n else []

def interleave(a, mf, fill, lead=0, tail=0, vm=None):
    tot = sum(f[1] for f in fill)
    n = len(mf)
    span = max(1, n - lead - tail)
    acc = 0.0; k = 0
    def emit(f):
        a(f[0])
        if len(f) > 2 and vm is not None: vm.issue(f[2])
    for i, m in enumerate(mf):
        a(m)
        if i < lead: continue
        target = tot * min(1.0, (i + 1 - lead) / float(span))
        while k < len(fill) and acc + fill[k][1] * 0.5 <= target + 1e-9:
            emit(fill[k]); acc += fill[k][1]; k += 1
    while k < len(fill):
        emit(fill[k]); k += 1

def gaps(a, mf, gapfill):
    for i, m in enumerate(mf):
        a(m)
        for l in gapfill.get(i, []): a(l)

def place(gf, start, groups):
    for k, g in enumerate(groups):
        gf.setdefault(start + k, []).extend(g)

def gen_main(cfg, kname):
    a = Asm()
    nst = [0]
    def stamp():
        if cfg.stamps:
            i = nst[0]; nst[0] += 1
            a("%s s[%d:%d]" % ("s_memtime" if cfg.cyc else "s_memrealtime", 64 + 2 * i, 65 + 2 * i))
            a("s_waitcnt lgkmcnt(0)")
    a("s_cmp_ge_u32 s2, 256")
    a("s_cbranch_scc1 L_end")
    stamp()
    a.c("decode work item: xcd = wg&7, j = wg>>3, grp = xcd*4 + (j>>3), b = j&7, branch = grp>>4, hkv = grp&15")
    a("""
    s_and_b32 s3, s2, 7
    s_lshr_b32 s4, s2, 3
    s_lshr_b32 s5, s4, 3
    s_lshl_b32 s3, s3, 2
    s_add_u32 s3, s3, s5
    s_and_b32 s4, s4, 7
    s_and_b32 s5, s3, 15
    s_lshr_b32 s3, s3, 4
    s_mul_i32 s6, s3, 40
    s_add_u32 s8, s0, s6
    s_addc_u32 s9, s1, 0
    s_load_dwordx2 s[16:17], s[8:9], 0
    s_load_dwordx2 s[20:21], s[8:9], 24
    s_load_dwordx2 s[12:13], s[8:9], 8
    s_load_dwordx2 s[44:45], s[8:9], 16
    s_load_dwordx2 s[24:25], s[8:9], 32
    s_load_dwordx2 s[28:29], s[0:1], 96
    v_lshrrev_b32 v4, 6, v0
    v_and_b32 v1, 63, v0
    v_readfirstlane_b32 s6, v4
    v_and_b32 v2, 15, v0
    v_lshrrev_b32 v3, 4, v1
    s_lshr_b32 s7, s6, 1
    s_and_b32 s8, s6, 1
    s_lshl_b32 s33, s6, 13
    """)
    vm = VM(a)
    if cfg.codepf:
        a.c("pull the kernel's own code into L2: one dword per 128-B line, 256 lanes x 128 B = 32 KB")
        a("s_getpc_b64 s[60:61]")
        a.label("L_pc0")
        a("s_and_b32 s61, s61, 0xffff")
        a("s_mov_b32 s62, L_code_end-L_pc0")
        a("s_mov_b32 s63, 0x20000")
        a("v_lshlrev_b32 v5, 7, v0")
        a("buffer_load_dword v255, v5, s[60:63], 0 offen")
        vm.issue("pf")
    a.c("s3=branch s4=b s5=hkv s6=wave s7=qh s8=kh s33=wave*8192")
    a.c("rotated pair index table s[48:56] = ((rot + i) mod 9)")
    if cfg.rot: a("s_mov_b32 s48, s4")
    else: a("s_mov_b32 s48, 0")
    a("s_add_u32 s49, s48, 1")
    a.c("x DMA voffsets: v24 (rt = qh, +2 via soffset), v25 (rt = 4); wq DMA voffsets v26 (even piece) v27 (odd piece)")
    a("""
    v_lshrrev_b32 v20, 3, v1
    v_lshrrev_b32 v21, 1, v20
    s_lshl_b32 s9, s8, 2
    v_xor_b32 v21, s9, v21
    v_and_b32 v22, 7, v1
    v_xor_b32 v21, v21, v22
    s_lshl_b32 s9, s8, 3
    v_add_u32 v26, s9, v20
    v_mul_u32_u24 v26, 1152, v26
    v_lshl_add_u32 v26, v21, 4, v26
    s_mul_i32 s9, s7, 18432
    v_add_u32 v24, s9, v26
    v_add_u32 v25, %d, v26
    v_and_b32 v21, 2, v20
    v_xor_b32 v21, v21, v22
    v_lshlrev_b32 v26, 13, v20
    v_xor_b32 v27, 4, v21
    v_lshl_add_u32 v27, v27, 4, v26
    v_lshl_add_u32 v26, v21, 4, v26
    s_lshl_b32 s57, s7, 11
    s_lshl_b32 s9, s8, 10
    s_add_u32 s57, s57, s9
    s_add_u32 s58, s9, 8192
    s_mul_i32 s9, s4, 92160
    s_lshl_b32 s11, s5, 9
    s_lshl_b32 s10, s6, 7
    s_add_u32 s11, s11, s10
    s_mov_b32 s18, 92160
    s_mov_b32 s19, 0x20000
    s_sub_u32 s22, %d, s11
    s_mov_b32 s23, 0x20000
    s_waitcnt lgkmcnt(0)
    s_add_u32 s16, s16, s9
    s_addc_u32 s17, s17, 0
    s_and_b32 s17, s17, 0xffff
    s_add_u32 s20, s20, s11
    s_addc_u32 s21, s21, 0
    s_and_b32 s21, s21, 0xffff
    """ % (4 * 18432, 576 * 8192))
    XSLOT = [slot_of(0), slot_of(1), slot_of(2)]
    def xbase(p): return XSLOT[p // 3] * SLOT + (p % 3) * 10240
    def x_issue(p):
        tag = "x%d" % p
        b = xbase(p)
        return [
            ("s_lshl_b32 s10, s%d, 7\ns_add_u32 m0, s57, %d\ns_add_u32 s11, s10, 36864\nbuffer_load_dwordx4 v24, s[16:19], s10 offen %s lds" % (48 + p, b, cfg.w_flag), 16, tag),
            ("s_add_u32 m0, s57, %d\ns_nop 0\nbuffer_load_dwordx4 v24, s[16:19], s11 offen %s lds" % (b + 4096, cfg.w_flag), 12, tag),
            ("s_add_u32 m0, s58, %d\ns_nop 0\nbuffer_load_dwordx4 v25, s[16:19], s10 offen %s lds" % (b, cfg.w_flag), 12, tag)]
    def went(ks):
        e = ks % 4
        return (e >> 1) * SLOT + (e & 1) * 4096
    def wq_issue(ks):
        tag = "wq%d" % ks
        out = []
        for j in range(4):
            pre = ""
            if j == 0:
                pre = "s_lshl_b32 s9, s%d, 19\ns_add_u32 m0, s33, %d\n" % (48 + ks // 2, went(ks))
            out.append((pre + "s_add_u32 s59, s9, %d\nbuffer_load_dwordx4 v%d, s[20:23], s59 offen offset:%d %s lds" % (
                (ks & 1) * 262144 + j * (65536 - 1024), 26 + (j & 1), j * 1024, cfg.w_flag), 16 if j == 0 else 8, tag))
        return out
    def emit(lst):
        for f in lst:
            a(f[0])
            if len(f) > 2: vm.issue(f[2])
    emit(x_issue(0)); emit(wq_issue(0)); emit(wq_issue(1)); emit(x_issue(1))
    for i in range(2, 9):
        a("s_add_u32 s%d, s%d, 1" % (48 + i, 47 + i))
        a("s_cmp_eq_u32 s%d, 9" % (48 + i))
        a("s_cselect_b32 s%d, 0, s%d" % (48 + i, 48 + i))
    a.c("x fragment read addresses: c*128 + (((4*(ks&1) + g) ^ (c>>1)) << 4): v28/v29 (+64K), v30/v31 (+128K)")
    a("""
    v_lshrrev_b32 v21, 1, v2
    v_xor_b32 v21, v21, v3
    v_lshlrev_b32 v22, 7, v2
    v_add_u32 v22, 0x10000, v22
    v_lshl_add_u32 v28, v21, 4, v22
    v_xor_b32 v21, 4, v21
    v_lshl_add_u32 v29, v21, 4, v22
    v_add_u32 v30, 0x10000, v28
    v_add_u32 v31, 0x10000, v29
    """)
    a.c("wq fragment read addresses v32..v35 (tile i): wave*8192 + g*1024 + r*128 + ((i ^ ((r>>1) | ((g&1)<<1))) << 5) + cc*8")
    a("""
    v_lshrrev_b32 v21, 2, v2
    v_lshlrev_b32 v22, 7, v21
    v_lshl_add_u32 v22, v3, 10, v22
    v_and_b32 v23, 3, v2
    v_lshl_add_u32 v22, v23, 3, v22
    v_add_u32 v22, s33, v22
    v_lshrrev_b32 v21, 1, v21
    v_and_b32 v23, 1, v3
    v_lshl_or_b32 v21, v23, 1, v21
    """)
    for i in range(4):
        a("v_xor_b32 v23, %d, v21" % i)
        a("v_lshl_add_u32 v%d, v23, 5, v22" % (32 + i))
    a.c("K/V DMA SRD (waves 0,1: K ; waves 2,3: V)")
    a("""
    s_cmp_eq_u32 s7, 0
    s_cselect_b32 s12, s12, s44
    s_cselect_b32 s13, s13, s45
    s_lshl_b32 s9, s4, 4
    s_add_u32 s9, s9, s5
    s_lshl_b32 s9, s9, 18
    s_add_u32 s12, s12, s9
    s_addc_u32 s13, s13, 0
    s_and_b32 s13, s13, 0xffff
    s_mov_b32 s14, 262144
    s_mov_b32 s15, 0x20000
    v_lshlrev_b32 v21, s7, v3
    v_xor_b32 v21, v21, v2
    s_cmp_eq_u32 s7, 0
    s_cselect_b32 s9, 4, 8
    s_cselect_b32 s10, 8, 0
    s_cselect_b32 s11, 12, 8
    v_lshlrev_b32 v22, 8, v3
    v_lshl_add_u32 v4, v21, 4, v22
    v_xor_b32 v23, s9, v21
    v_lshl_add_u32 v5, v23, 4, v22
    v_xor_b32 v23, s10, v21
    v_lshl_add_u32 v6, v23, 4, v22
    v_xor_b32 v23, s11, v21
    v_lshl_add_u32 v7, v23, 4, v22
    s_lshl_b32 s32, s8, 13
    """)
    def kv_issue(stage):
        out = []
        tag = "kv%d" % stage
        for h in range(2):
            for j in range(4):
                pre = ""
                if j == 0:
                    pre = "s_add_u32 m0, s33, %d\ns_add_u32 s59, s32, %d\n" % (slot_of(stage) * SLOT + h * 4096, stage * 16384 + h * 4096)
                out.append((pre + "buffer_load_dwordx4 v%d, s[12:15], s59 offen offset:%d %s lds" % (V_DMA + j, j * 1024, cfg.kv_flag), 16 if j == 0 else 8, tag))
        return out
    a.c("wo / ws SRDs ; s[46:47] = ws base")
    cs = f32bits(math.log2(math.e) / math.sqrt(128.0))
    a("""
    s_mul_i32 s9, s5, 294912
    s_add_u32 s24, s24, s9
    s_addc_u32 s25, s25, 0
    s_and_b32 s25, s25, 0xffff
    s_mov_b32 s26, 294912
    s_mov_b32 s27, 0x20000
    s_mov_b32 s46, s28
    s_and_b32 s47, s29, 0xffff
    s_lshl_b32 s9, s3, 3
    s_add_u32 s39, s9, s4
    s_mul_i32 s9, s39, %d
    s_add_u32 s28, s28, s9
    s_addc_u32 s29, s29, 0
    s_and_b32 s29, s29, 0xffff
    s_mov_b32 s30, %d
    s_mov_b32 s31, 0x20000
    s_mul_i32 s42, s5, %d
    s_mov_b32 s38, 0x40004000
    s_mov_b32 s40, 0x%08x
    s_mov_b32 s41, 0x%08x
    """ % (16 * PART, 16 * PART, PART, cs, cs))
    a.c("s39 = group (branch*8+b) ; s[28:31] = the group's 16 partials ; s42 = own partial offset")
    a.c("K read addresses (stage 0): kh*8192 + c*256 + (((4ks + g) ^ c) << 4)")
    a("""
    v_xor_b32 v21, v3, v2
    s_lshl_b32 s9, s8, 13
    s_add_u32 s9, s9, %d
    v_lshlrev_b32 v22, 8, v2
    v_add_u32 v22, s9, v22
    """ % (slot_of(0) * SLOT))
    for ks in range(4):
        a("v_xor_b32 v23, %d, v21" % (4 * ks))
        a("v_lshl_add_u32 v%d, v23, 4, v22" % (V_KA + ks))
    a.c("V read addresses")
    a("""
    v_lshrrev_b32 v21, 2, v2
    v_lshl_add_u32 v22, v3, 2, v21
    v_and_b32 v21, 7, v22
    v_lshlrev_b32 v22, 8, v22
    v_and_b32 v23, 3, v2
    v_lshl_add_u32 v22, v23, 3, v22
    s_add_u32 s9, s9, 16384
    v_add_u32 v22, s9, v22
    s_lshl_b32 s10, s8, 2
    v_xor_b32 v21, s10, v21
    """)
    for i in range(8):
        a("v_xor_b32 v23, %d, v21" % i)
        a("v_lshl_add_u32 v%d, v23, 5, v22" % (V_VA + i))
    a("s_mov_b32 s9, 0x3f803f80")
    for i in range(4): a("v_accvgpr_write_b32 a%d, s9" % (A_ONE + i))
    a.c("wo DMA voffset v23 ; merge addresses v[192:195] ; Q exchange addresses v196 (write) v197 (read)")
    a("""
    v_lshrrev_b32 v21, 3, v1
    v_mul_u32_u24 v23, 1152, v21
    v_and_b32 v21, 6, v21
    v_and_b32 v22, 7, v1
    v_xor_b32 v21, v21, v22
    v_lshl_add_u32 v23, v21, 4, v23
    s_mul_i32 s35, s6, %d
    s_xor_b32 s9, s6, 1
    s_mul_i32 s9, s9, %d
    s_add_u32 s9, s9, %d
    s_mul_i32 s10, s6, %d
    s_add_u32 s10, s10, %d
    v_lshlrev_b32 v20, 4, v1
    v_add_u32 v192, s9, v20
    v_add_u32 v193, s10, v20
    v_lshlrev_b32 v22, 2, v1
    v_add_u32 v194, s9, v22
    v_add_u32 v195, s10, v22
    v_lshrrev_b32 v21, 1, v3
    v_lshl_add_u32 v21, v21, 4, v2
    v_lshlrev_b32 v21, 4, v21
    v_and_b32 v22, 1, v3
    v_lshl_add_u32 v21, v22, 3, v21
    s_mul_i32 s9, s7, 20480
    s_lshl_b32 s10, s8, 11
    s_add_u32 s10, s10, s9
    v_add_u32 v196, s10, v21
    v_add_u32 v197, s9, v20
    s_mov_b32 s34, 0
    s_mov_b32 s44, %d
    s_mov_b32 s45, 0x10000
    """ % (8 * 9216, INBOX, MB, INBOX, MB, slot_of(0) * SLOT))
    emit(wq_issue(2)); emit(wq_issue(3)); emit(x_issue(2))
    a.c("zero the accumulators kept in AGPRs")
    for r in range(100): a("v_accvgpr_write_b32 a%d, 0" % r)
    XF = [100, 120]
    WF = [140, 156]
    def x_reads(ks):
        out = []
        b = xbase(ks // 2)
        reg, off = (28, b - 0x10000) if b < 0x20000 else (30, b - 0x20000)
        for rt in range(5):
            out.append(("ds_read_b128 %s, v%d offset:%d" % (ar(XF[ks & 1] + rt * 4), reg + (ks & 1), off + rt * 2048), 4))
        return out
    def w_reads(ks):
        out = []
        off = went(ks)
        for i in range(4):
            for h in range(2):
                out.append(("ds_read_b64_tr_b16 %s, v%d offset:%d" % (ar(WF[ks & 1] + i * 4 + 2 * h, 2), 32 + i, off + h * 512), 4))
        return out
    vm.wait("x0", "wq0")
    a("s_barrier")
    stamp()
    emit(w_reads(0)); emit(x_reads(0))
    kvq = kv_issue(0) + kv_issue(1)
    def qconv(rt):
        out = []
        for i in range(4):
            b = V_O + (i * 5 + rt) * 4
            out.append("v_pk_mul_f32 %s, %s, s[40:41]" % (vr(b, 2), vr(b, 2)))
            out.append("v_pk_mul_f32 %s, %s, s[40:41]" % (vr(b + 2, 2), vr(b + 2, 2)))
        for i in range(4):
            b = V_O + (i * 5 + rt) * 4
            d = 36 + (rt * 4 + i) * 2
            out.append("v_cvt_pk_bf16_f32 v%d, v%d, v%d" % (d, b, b + 1))
            out.append("v_cvt_pk_bf16_f32 v%d, v%d, v%d" % (d + 1, b + 2, b + 3))
            out.append("ds_write_b64 v196, %s offset:%d" % (vr(d, 2), rt * 4096 + (i >> 1) * 1024 + (i & 1) * 512))
        return out
    for ks in range(18):
        mf = []
        for rt in range(5):
            for i in range(4):
                acc = vr(V_O + (i * 5 + rt) * 4)
                mf.append("%s %s, %s, %s, %s" % (MFMA, acc, ar(WF[ks & 1] + i * 4), ar(XF[ks & 1] + rt * 4), "0" if ks == 0 else acc))
        need = []
        if ks + 1 < 18: need.append("wq%d" % (ks + 1))
        bar = ks in (1, 5, 11, 17)
        if ks == 1: need += ["x1", "x2"]
        if ks == 5: need += ["x%d" % p for p in range(3, 9)]
        if cfg.stamps and ks in (6,): stamp()
        vm.wait(*need)
        a("s_waitcnt lgkmcnt(0)")
        if bar: a("s_barrier")
        dma = []
        if ks + 4 < 18: dma += wq_issue(ks + 4)
        if ks < 3: dma += x_issue(3 + 2 * ks) + x_issue(4 + 2 * ks)
        if ks in (14, 15, 16): dma += kvq[(ks - 14) * 4:(ks - 13) * 4]
        if ks < 17:
            rd = w_reads(ks + 1) + x_reads(ks + 1)
            interleave(a, mf[:9], rd, vm=vm)
            interleave(a, mf[9:], dma, vm=vm, tail=1)
        else:
            gf = {}
            c0 = qconv(0)
            place(gf, 10, [c0[0:2], c0[2:4], c0[4:6], c0[6:8], c0[8:10], c0[10:12], c0[12:14], c0[14:16], c0[16:18], c0[18:20]])
            gaps(a, mf, gf)
    stamp()
    for rt in range(1, 5):
        for l in qconv(rt): a(l)
    emit(kvq[12:16])
    for r in range(V_O, V_O + 80, 2): a("v_mov_b64 %s, 0" % vr(r, 2))
    vm.wait("kv0")
    a("s_waitcnt lgkmcnt(0)")
    a("s_barrier")
    stamp()
    kreads = {}
    for ks in range(4):
        for kt in range(2):
            kreads[ks * 2 + kt] = "ds_read_b128 %s, v%d offset:%d" % (ar(A_K + (kt * 4 + ks) * 4), V_KA + ks, kt * 4096)
    vreads = {}
    for i in range(8):
        vreads[i] = ["ds_read_b64_tr_b16 %s, v%d offset:%d" % (ar(A_V + i * 4 + 2 * h, 2), V_VA + i, h * 4096) for h in range(2)]
    def QK(rt):
        out = []
        for ks in range(4):
            for kt in range(2):
                s = vr(V_S + rt * 8 + kt * 4)
                out.append("%s %s, %s, %s, %s" % (MFMA, s, ar(A_K + (kt * 4 + ks) * 4), ar(A_Q + (rt * 4 + ks) * 4),
                                                   vr(V_NM + rt * 4) if ks == 0 else s))
        return out
    def PV(rt):
        out = []
        for i in range(8):
            out.append("%s %s, %s, %s, %s" % (MFMA, Otile(i, rt), ar(A_V + i * 4), vr(V_P + rt * 4), Otile(i, rt)))
        out.append("%s %s, %s, %s, %s" % (MFMA, ar(A_L + rt * 4), ar(A_ONE), vr(V_P + rt * 4), ar(A_L + rt * 4)))
        return out
    def SM(rt):
        S = V_S + rt * 8; p = V_P + rt * 4; E = V_E
        ex = lambda t: "v_exp_f32 v%d, v%d" % (E + t, S + t)
        cv = lambda t: "v_cvt_pk_bf16_f32 v%d, v%d, v%d" % (p + t, E + 2 * t, E + 2 * t + 1)
        return [[ex(0)], [ex(1)], [ex(2)], [ex(3)], [ex(4)], [cv(0), cv(1)], [ex(5)], [ex(6)], [ex(7)],
                [cv(2), "v_or3_b32 v%d, v%d, v%d, v%d" % (V_T, p, p + 1, p + 2)],
                [cv(3), "v_bitop3_b32 v%d, v%d, v%d, s38 bitop3:0xa8" % (V_T, V_T, p + 3)],
                ["v_cmp_ne_u32 vcc, 0, v%d" % V_T]]
    nchk = [0]
    chk_sites = []
    def CHECK(rt):
        n = nchk[0]; nchk[0] += 1
        chk_sites.append((n, rt))
        return ["s_cbranch_vccnz L_slow%d" % n, "L_back%d:" % n]
    kadv = ["v_add_u32 v%d, s11, v%d" % (r, r) for r in range(V_KA, V_KA + 4)]
    vadv = ["v_add_u32 v%d, s11, v%d" % (r, r) for r in range(V_VA, V_VA + 8)]
    slotadv = ["s_mov_b32 s43, s44", "s_add_u32 s44, s44, %d" % SLOT, "s_cmp_eq_u32 s44, %d" % (5 * SLOT),
               "s_cselect_b32 s44, s45, s44", "s_sub_u32 s11, s44, s43"]
    for ks in range(4): a(kreads[2 * ks])
    for rt in range(5):
        for ks in range(4):
            a("ds_read_b128 %s, v197 offset:%d" % (ar(A_Q + (rt * 4 + ks) * 4), (rt * 4 + ks) * 1024))
    for ks in range(4): a(kreads[2 * ks + 1])
    k2 = kv_issue(2)
    mf = []
    gf = {}
    for rt in range(5):
        s = vr(V_S + rt * 8)
        for ks in range(4):
            mf.append("%s %s, %s, %s, %s" % (MFMA, s, ar(A_K + ks * 4), ar(A_Q + (rt * 4 + ks) * 4), "0" if ks == 0 else s))
    a("s_waitcnt lgkmcnt(12)")
    gf[7] = ["s_waitcnt lgkmcnt(4)"]
    for i in range(8): gf.setdefault(8 + i, []).extend(vreads[i])
    gaps(a, mf, gf)
    for l in slotadv: a(l)
    for l in kadv: a(l)
    for rt in range(5):
        S = V_S + rt * 8
        a("v_max3_f32 v%d, v%d, v%d, v%d" % (S, S, S + 1, S + 2))
    for rt in range(5):
        S = V_S + rt * 8
        a("v_max_f32 v%d, v%d, v%d" % (S, S, S + 3))
    for swap in ("v_permlane32_swap_b32", "v_permlane16_swap_b32"):
        for rt in range(5):
            S = V_S + rt * 8
            a("v_mov_b32 v%d, v%d" % (S + 1, S))
        for rt in range(5):
            S = V_S + rt * 8
            if rt == 0: a("s_nop 0")
            a("%s v%d, v%d" % (swap, S, S + 1))
        for rt in range(5):
            S = V_S + rt * 8
            a("v_max_f32 v%d, v%d, v%d" % (S, S, S + 1))
    for rt in range(5):
        S = V_S + rt * 8
        a("v_sub_f32 v%d, 0x%08x, v%d" % (V_NM + rt * 4, f32bits(-cfg.BIAS), S))
    for rt in range(5):
        for r in range(1, 4):
            a("v_mov_b32 v%d, v%d" % (V_NM + rt * 4 + r, V_NM + rt * 4))
    a("s_waitcnt lgkmcnt(0)")
    gf = {}
    for k in range(8): gf.setdefault(k, []).extend(k2[k][0].split("\n"))
    gaps(a, QK(0), gf)
    a("s_add_u32 s32, s32, %d" % (3 * 16384))
    gf = {}
    sm = SM(0)
    place(gf, 3, [sm[0] + sm[1], sm[2] + sm[3], sm[4] + sm[5], sm[6] + sm[7], sm[8] + sm[9] + sm[10] + sm[11]])
    gaps(a, QK(1), gf)
    for l in CHECK(0): a(l)
    ndma = [0]
    def dma1(h, j):
        n = ndma[0]; ndma[0] += 1
        return ["s_cbranch_scc1 L_nd%d" % n,
                "buffer_load_dwordx4 v%d, s[12:15], %s offen offset:%d %s lds" % (V_DMA + j, "s32" if h == 0 else "s10", j * 1024, cfg.kv_flag),
                "L_nd%d:" % n]
    stamp()
    loop_start = len(a.lines)
    a.label("L_loop")
    if cfg.stamps:
        for it in (1, 13):
            a("s_cmp_eq_u32 s34, %d" % it)
            a("s_cbranch_scc0 L_ns%d" % it)
            stamp()
            a.label("L_ns%d" % it)
    gf = {}
    place(gf, 0, SM(1))
    gf.setdefault(7, []).append("s_waitcnt lgkmcnt(0)")
    place(gf, 12, [vadv[0:2], vadv[2:4], vadv[4:6], vadv[6:8]])
    gf.setdefault(15, []).extend(CHECK(1))
    gaps(a, QK(2) + PV(0), gf)
    gf = {}
    place(gf, 0, SM(2))
    gf.setdefault(12, []).extend(["s_add_u32 s9, s33, s43", "s_mov_b32 m0, s9"])
    gf.setdefault(13, []).extend(["s_add_u32 s10, s32, 4096", "s_add_u32 s9, s9, 4096"])
    gf.setdefault(14, []).extend(CHECK(2))
    gf.setdefault(15, []).extend(["s_cmp_eq_u32 s34, 15"])
    gf.setdefault(16, []).extend(["s_cbranch_scc1 L_last", "s_waitcnt vmcnt(8)"])
    gaps(a, QK(3) + PV(1), gf)
    a("s_barrier")
    gf = {}
    for k in range(8): gf[k] = [kreads[k]]
    gf[0].append("s_cmp_ge_u32 s34, 13")
    for k in range(4): gf[k].extend(dma1(0, k))
    place(gf, 4, SM(3))
    gf.setdefault(16, []).extend(CHECK(3))
    gaps(a, QK(4) + PV(2), gf)
    a("s_waitcnt lgkmcnt(0)")
    gf = {}
    place(gf, 0, SM(4))
    gf.setdefault(11, []).extend(["s_mov_b32 m0, s9"])
    gf.setdefault(12, []).extend(["s_add_u32 s32, s32, 16384", "s_cmp_ge_u32 s34, 13"])
    for k in range(4): gf.setdefault(12 + k, []).extend(dma1(1, k))
    gf.setdefault(16, []).extend(CHECK(4))
    gaps(a, QK(0) + PV(3), gf)
    gf = {}
    place(gf, 0, SM(0))
    for i in range(8): gf.setdefault(8 + i, []).extend(vreads[i])
    gf.setdefault(12, []).extend(slotadv[:3])
    gf.setdefault(13, []).extend(slotadv[3:])
    gf.setdefault(14, []).extend(kadv[:2])
    gf.setdefault(15, []).extend(kadv[2:])
    gf.setdefault(16, []).extend(CHECK(0) + ["s_add_u32 s34, s34, 1", "s_cmp_lt_u32 s34, 14"])
    gaps(a, QK(1) + PV(4), gf)
    a("s_cbranch_scc1 L_loop")
    a.c("K/V stream finished: prefetch wo column groups 0,1 (rotated order) into slots 0,1")
    a("""
    s_sub_u32 s9, s34, 14
    s_add_u32 s10, s9, s48
    s_lshl_b32 s10, s10, 7
    s_add_u32 s10, s10, s35
    s_lshl_b32 s9, s9, 15
    s_add_u32 s9, s9, s33
    """)
    for h in range(2):
        a("s_add_u32 m0, s9, %d" % (h * 4096))
        for j in range(4):
            a("s_add_u32 s59, s10, %d" % ((h * 4 + j) * 9216 - j * 1024))
            a("buffer_load_dwordx4 v23, s[24:27], s59 offen offset:%d %s lds" % (j * 1024, cfg.wo_flag))
    a("s_branch L_loop")
    if cfg.strip:
        body = a.lines[loop_start:]
        def keep(l):
            t = l.strip()
            if "d" in cfg.strip and (t.startswith("buffer_load") or t.startswith("s_cbranch_scc1 L_nd") or "vmcnt" in t): return False
            if "b" in cfg.strip and t.startswith("s_barrier"): return False
            if "e" in cfg.strip and t.startswith("v_exp"): return False
            if "v" in cfg.strip and t.startswith(("v_cvt", "v_or3", "v_bitop3", "v_add_u32")): return False
            if "c" in cfg.strip and t.startswith(("v_cmp", "s_cbranch_vccnz")): return False
            if "l" in cfg.strip and (t.startswith("ds_read")): return False
            return True
        a.lines = a.lines[:loop_start] + [l for l in body if keep(l)]
    loop_end = len(a.lines)
    a.label("L_last")
    a("s_barrier")
    def mwrites(rt):
        out = ["ds_write_b128 v192, %s offset:%d" % (Otile(4 + i, rt), (rt * 4 + i) * 1024) for i in range(4)]
        out.append("ds_write_b32 v194, v%d offset:%d" % (V_NM + rt * 4, 20480 + rt * 256))
        out.append("ds_write_b32 v194, a%d offset:%d" % (A_L + rt * 4, 20480 + (5 + rt) * 256))
        out.append("v_accvgpr_read_b32 v%d, a%d" % (V_NM + rt * 4 + 1, A_L + rt * 4))
        return out
    gf = {}
    place(gf, 0, SM(3))
    w = mwrites(0) + mwrites(1)
    for k, l in enumerate(w): gf.setdefault(k + 2, []).append(l)
    gf.setdefault(16, []).extend(CHECK(3))
    gaps(a, QK(4) + PV(2), gf)
    gf = {}
    sm = SM(4)
    place(gf, 0, [sm[0] + sm[1], sm[2], sm[3] + sm[4], sm[5], sm[6] + sm[7], sm[8], sm[9], sm[10], sm[11]])
    w = mwrites(2)
    for k, l in enumerate(w): gf.setdefault(k + 2, []).append(l)
    gf[8].extend(CHECK(4))
    gaps(a, PV(3), gf)
    a("s_nop 0")
    gf = {}
    w = mwrites(3)
    place(gf, 4, [w[0:1], w[1:2], w[2:3], w[3:5], w[5:7]])
    ad = """v_lshrrev_b32 v26, 2, v2
    v_and_b32 v27, 1, v3
    v_lshl_add_u32 v26, v27, 2, v26
    v_lshrrev_b32 v27, 1, v26
    v_xor_b32 v27, s6, v27
    v_lshlrev_b32 v25, 7, v26
    v_lshl_add_u32 v25, v27, 5, v25
    v_and_b32 v27, 3, v2
    v_lshl_add_u32 v25, v27, 3, v25
    v_lshrrev_b32 v27, 1, v3
    v_lshl_add_u32 v25, v27, 10, v25
    v_add_u32 v26, 0x10000, v25
    v_add_u32 v27, 0x20000, v25""".split("\n")
    place(gf, 0, [ad[0:2], ad[2:4], ad[4:6], ad[6:8]])
    gaps(a, PV(4), gf)
    for l in ad[8:]: a(l)
    a("s_nop 2")
    for l in mwrites(4): a(l)
    stamp()
    a("s_waitcnt lgkmcnt(0)")
    a("s_barrier")
    for rt in range(5):
        a("ds_read_b32 v%d, v195 offset:%d" % (52 + rt, 20480 + rt * 256))
        a("ds_read_b32 v%d, v195 offset:%d" % (57 + rt, 20480 + (5 + rt) * 256))
    def IN(rt, i):
        n = rt * 4 + i
        return (200 + n * 4) if n < 14 else (32 + (n - 14) * 4) if n < 19 else 62
    inreads = ["ds_read_b128 %s, v193 offset:%d" % (vr(IN(rt, i)), (rt * 4 + i) * 1024) for rt in range(5) for i in range(4)]
    for l in inreads[:4]: a(l)
    a("s_waitcnt lgkmcnt(4)")
    BO, BT = 66, 76
    st = []
    for rt in range(5):
        nm = V_NM + rt * 4
        st.append("v_min_f32 v%d, v%d, v%d" % (nm + 2, nm, 52 + rt))
        st.append("v_sub_f32 v%d, v%d, v%d" % (nm, nm + 2, nm))
        st.append("v_sub_f32 v%d, v%d, v%d" % (52 + rt, nm + 2, 52 + rt))
    for rt in range(5):
        nm = V_NM + rt * 4
        st.append("v_exp_f32 v%d, v%d" % (nm, nm))
        st.append("v_exp_f32 v%d, v%d" % (52 + rt, 52 + rt))
    for rt in range(5):
        nm = V_NM + rt * 4
        st.append("v_mul_f32 v%d, v%d, v%d" % (nm + 1, nm, nm + 1))
        st.append("v_fmac_f32 v%d, v%d, v%d" % (nm + 1, 52 + rt, 57 + rt))
    for rt in range(5):
        nm = V_NM + rt * 4
        st.append("v_rcp_f32 v%d, v%d" % (nm + 1, nm + 1))
    for rt in range(5):
        nm = V_NM + rt * 4
        st.append("v_mul_f32 v%d, v%d, v%d" % (BO + 2 * rt, nm, nm + 1))
        st.append("v_mul_f32 v%d, v%d, v%d" % (BT + 2 * rt, 52 + rt, nm + 1))
    rest = inreads[4:]
    for k, l in enumerate(st):
        a(l)
        if k % 2 == 0 and rest: a(rest.pop(0))
    for l in rest: a(l)
    for rt in range(5):
        for i in range(4):
            o = V_O + (i * 5 + rt) * 4
            for h in range(2):
                a("v_pk_mul_f32 %s, %s, %s op_sel_hi:[1,0]" % (vr(o + 2 * h, 2), vr(o + 2 * h, 2), vr(BO + 2 * rt, 2)))
    a("s_waitcnt lgkmcnt(0)")
    for rt in range(5):
        for i in range(4):
            o = V_O + (i * 5 + rt) * 4
            for h in range(2):
                a("v_pk_fma_f32 %s, %s, %s, %s op_sel_hi:[1,0,1]" % (vr(o + 2 * h, 2), vr(IN(rt, i) + 2 * h, 2), vr(BT + 2 * rt, 2), vr(o + 2 * h, 2)))
        for e in range(2):
            d = 92 + ((rt * 2 + e) % 4) * 4
            for t in range(4):
                o = V_O + ((2 * e + (t >> 1)) * 5 + rt) * 4 + 2 * (t & 1)
                a("v_cvt_pk_bf16_f32 v%d, v%d, v%d" % (d + t, o, o + 1))
            a("ds_write_b128 v193, %s offset:%d" % (vr(d), (e * 5 + rt) * 1024))
    a("""
    v_lshlrev_b32 v20, 4, v1
    v_add_u32 v21, %d, v20
    s_mul_i32 s9, s6, 2560
    s_add_u32 s9, s9, s42
    v_add_u32 v28, s9, v20
    v_add_u32 v20, %d, v20
    v_lshlrev_b32 v29, 3, v1
    v_add_u32 v29, s9, v29
    s_waitcnt vmcnt(0) lgkmcnt(0)
    s_barrier
    """ % (MB + 2 * INBOX, MB))
    stamp()
    A_OF = 0
    A_WF = [160, 192]
    V_ACC = [32, 52]
    V_ST = [72, 84]
    def wf_reads(cg):
        slot = cg % 5
        reg, off = 25 + (slot >> 1), (slot & 1) * SLOT
        out = []
        for kk in range(8):
            for h in range(2):
                out.append(("ds_read_b64_tr_b16 %s, v%d offset:%d" % (ar(A_WF[cg & 1] + kk * 4 + 2 * h, 2), reg, off + kk * 4096 + h * 2048), 4))
        return out
    def wo_issue(cg):
        slot = cg % 5
        out = []
        tag = "wo%d" % cg
        for h in range(2):
            for j in range(4):
                pre = ""
                if j == 0:
                    pre = "s_add_u32 m0, s33, %d\n" % (slot * SLOT + h * 4096)
                    pre += "s_lshl_b32 s9, s%d, 7\ns_add_u32 s9, s9, s35\n" % (48 + cg)
                out.append((pre + "s_add_u32 s10, s9, %d\nbuffer_load_dwordx4 v23, s[24:27], s10 offen offset:%d %s lds" % (
                    (h * 4 + j) * 9216 - j * 1024, j * 1024, cfg.wo_flag), 12, tag))
        return out
    vm = VM(a)
    def of_reads(kk):
        w = kk >> 1
        reg, off = (20, w * INBOX) if w < 2 else (21, (w - 2) * INBOX)
        return ["ds_read_b128 %s, v%d offset:%d" % (ar(A_OF + (kk * 5 + rt) * 4), reg, off + ((kk & 1) * 5 + rt) * 1024) for rt in range(5)]
    def stores(cg):
        acc = V_ACC[cg & 1]; st = V_ST[cg & 1]
        out = []
        for rt in range(5):
            out.append(("v_cvt_pk_bf16_f32 v%d, v%d, v%d" % (st + 2 * rt, acc + rt * 4, acc + rt * 4 + 1), 4))
            out.append(("v_cvt_pk_bf16_f32 v%d, v%d, v%d" % (st + 2 * rt + 1, acc + rt * 4 + 2, acc + rt * 4 + 3), 4))
        out.append(("s_mul_i32 s11, s%d, 10240" % (48 + cg), 4))
        out.append(("buffer_store_dwordx4 %s, v28, s[28:31], s11 offen %s" % (vr(st), cfg.st_flag), 8, "st"))
        out.append(("buffer_store_dwordx4 %s, v28, s[28:31], s11 offen offset:1024 %s" % (vr(st + 4), cfg.st_flag), 8, "st"))
        out.append(("buffer_store_dwordx2 %s, v29, s[28:31], s11 offen offset:2048 %s" % (vr(st + 8, 2), cfg.st_flag), 8, "st"))
        return out
    for cg in range(9):
        mf = []
        for kk in range(8):
            for rt in range(5):
                acc = vr(V_ACC[cg & 1] + rt * 4)
                mf.append("%s %s, %s, %s, %s" % (MFMA, acc, ar(A_WF[cg & 1] + kk * 4), ar(A_OF + (kk * 5 + rt) * 4), "0" if kk == 0 else acc))
        if cg == 0:
            wf = [f[0] for f in wf_reads(0)]
            for kk in range(2):
                a(wf[2 * kk]); a(wf[2 * kk + 1])
                for l in of_reads(kk): a(l)
            for kk in range(8):
                a("s_waitcnt lgkmcnt(%d)" % (7 if kk < 7 else 0))
                gf = {}
                if kk + 2 < 8:
                    r = [wf[2 * kk + 4], wf[2 * kk + 5]] + of_reads(kk + 2)
                    place(gf, 0, [r[0:2], r[2:4], r[4:6], r[6:7]])
                gaps(a, mf[kk * 5:kk * 5 + 5], gf)
                if kk == 6:
                    pass
            a("s_barrier")
            emit(wf_reads(1))
            emit(wo_issue(2))
            emit(wo_issue(3)[:4])
            continue
        a("s_waitcnt lgkmcnt(0)")
        if cg in (1, 5): stamp()
        st = stores(cg - 1)
        if cg + 1 < 9:
            d1 = wo_issue(cg + 2)[4:] if cg + 2 < 9 else []
            d2 = wo_issue(cg + 3)[:4] if cg + 3 < 9 else []
            interleave(a, mf[:18], d1 + st, vm=vm, lead=1)
            vm.wait("wo%d" % (cg + 1))
            a("s_barrier")
            interleave(a, mf[18:], wf_reads(cg + 1) + d2, vm=vm, tail=3)
        else:
            interleave(a, mf, st, lead=3, vm=vm)
    a("s_nop 7")
    emit(stores(8))
    stamp()
    if cfg.fuse:
        a.c("publish: all stores drained, then one arrival on the group's word in d_debug")
        a("""
        s_load_dwordx2 s[16:17], s[0:1], 88
        s_load_dwordx2 s[20:21], s[0:1], 80
        s_lshl_b32 s36, s39, 4
        v_mov_b32 v5, 0
        v_mov_b32 v6, 1
        s_lshl_b32 s37, 1, s5
        s_waitcnt vmcnt(0) lgkmcnt(0)
        s_barrier
        s_and_b32 s17, s17, 0xffff
        s_mov_b32 s18, 256
        s_mov_b32 s19, 0x20000
        s_and_b32 s21, s21, 0xffff
        s_mov_b32 s22, %d
        s_mov_b32 s23, 0x20000
        """ % (8 * 80 * 1152 * 2))
        stamp()
        a("""
        s_cmp_eq_u32 s6, 0
        s_cbranch_scc0 L_wait
        s_mov_b64 exec, 1
        buffer_atomic_add v6, v5, s[16:19], s36 offen sc0
        s_waitcnt vmcnt(0)
        v_readfirstlane_b32 s9, v6
        s_and_b32 s10, s9, 0xffff
        s_cmp_eq_u32 s10, 15
        s_cbranch_scc0 L_poll0
        s_lshr_b32 s9, s9, 16
        s_or_b32 s37, s37, s9
        s_branch L_go
        """)
        a.label("L_poll0")
        a("s_mov_b32 s11, 0")
        a.label("L_poll")
        a("""
        s_cmp_ge_u32 s11, %d
        s_cbranch_scc1 L_giveup
        buffer_load_dword v6, v5, s[16:19], s36 offen sc1
        s_add_u32 s11, s11, 1
        s_waitcnt vmcnt(0)
        v_readfirstlane_b32 s9, v6
        s_and_b32 s9, s9, 0xffff
        s_cmp_eq_u32 s9, 16
        s_cbranch_scc1 L_go
        s_sleep 2
        s_branch L_poll
        """ % cfg.spin)
        a.label("L_giveup")
        a("""
        s_lshl_b32 s9, s37, 16
        v_mov_b32 v6, s9
        buffer_atomic_or v6, v5, s[16:19], s36 offen sc0
        s_waitcnt vmcnt(0)
        v_readfirstlane_b32 s9, v6
        s_and_b32 s9, s9, 0xffff
        s_cmp_eq_u32 s9, 16
        s_cselect_b32 s37, s37, 0
        """)
        a.label("L_go")
        a("""
        v_mov_b32 v6, s37
        ds_write_b32 v5, v6
        s_waitcnt lgkmcnt(0)
        s_mov_b64 exec, -1
        """)
        a.label("L_wait")
        a("""
        s_barrier
        ds_read_b32 v6, v5
        s_waitcnt lgkmcnt(0)
        v_readfirstlane_b32 s37, v6
        """)
        stamp()
        a.c("reduce the slices in mask s37: slice h = granules [h*360, +360); wave w takes 90 of them (64 + 26)")
        a.label("L_red")
        a("""
        s_cmp_eq_u32 s37, 0
        s_cbranch_scc1 L_fin
        s_ff1_i32_b32 s9, s37
        s_bitset0_b32 s37, s9
        s_mul_i32 s9, s9, 360
        s_mul_i32 s10, s6, 90
        s_add_u32 s9, s9, s10
        v_add_u32 v8, s9, v1
        v_add_u32 v9, 64, v8
        v_lshlrev_b32 v10, 4, v8
        v_lshlrev_b32 v11, 4, v9
        """)
        for h in range(16):
            a("s_mov_b32 s10, %d" % (h * PART))
            a("buffer_load_dwordx4 %s, v10, s[28:31], s10 offen %s" % (vr(32 + 8 * h), cfg.ld2_flag))
        a("s_mov_b64 exec, 0x3ffffff")
        for h in range(16):
            a("s_mov_b32 s10, %d" % (h * PART))
            a("buffer_load_dwordx4 %s, v11, s[28:31], s10 offen %s" % (vr(36 + 8 * h), cfg.ld2_flag))
        a("s_mov_b64 exec, -1")
        a("""
        s_and_b32 s10, s39, 7
        s_mul_i32 s10, s10, %d
        s_lshr_b32 s11, s39, 3
        s_mul_i32 s11, s11, 1152
        s_add_u32 s10, s10, s11
        """ % (80 * 2304))
        for q, o in ((8, 14), (9, 16)):
            a("""
            v_mul_u32_u24 v18, 52429, v%d
            v_lshrrev_b32 v18, 23, v18
            v_mul_u32_u24 v19, 160, v18
            v_sub_u32 v19, v%d, v19
            v_lshlrev_b32 v18, 5, v18
            v_cmp_gt_u32 vcc, 128, v19
            v_and_b32 v20, 63, v19
            v_lshrrev_b32 v21, 6, v19
            v_lshlrev_b32 v21, 5, v21
            v_lshlrev_b32 v22, 1, v20
            v_cndmask_b32 v20, v22, v20, vcc
            v_and_b32 v22, 15, v20
            v_add_u32 v21, v21, v22
            v_lshrrev_b32 v20, 4, v20
            v_lshl_add_u32 v18, v20, 3, v18
            v_mul_u32_u24 v21, 2304, v21
            v_add3_u32 v%d, v18, v21, s10
            v_mov_b32 v22, 2304
            v_mov_b32 v20, %d
            v_cndmask_b32 v22, v22, v20, vcc
            v_add_u32 v%d, v%d, v22
            """ % (q, q, o, 16 * 2304, o + 1, o))
        ACC = 160
        for part in range(2):
            for h in range(16):
                a("s_waitcnt vmcnt(%d)" % ((31 - h) if part == 0 else (15 - h + 2)))
                for d in range(4 * part, 4 * part + 4):
                    r = 32 + 8 * h + d
                    if h == 0:
                        a("v_lshlrev_b32 v%d, 16, v%d" % (ACC + 2 * d, r))
                        a("v_and_b32 v%d, 0xffff0000, v%d" % (ACC + 1 + 2 * d, r))
                    else:
                        t = 18 + 2 * (d & 1)
                        a("v_lshlrev_b32 v%d, 16, v%d" % (t, r))
                        a("v_and_b32 v%d, 0xffff0000, v%d" % (t + 1, r))
                        a("v_pk_add_f32 %s, %s, %s" % (vr(ACC + 2 * d, 2), vr(ACC + 2 * d, 2), vr(t, 2)))
            for d in range(4 * part, 4 * part + 4):
                a("v_cvt_pk_bf16_f32 v%d, v%d, v%d" % (176 + d, ACC + 2 * d, ACC + 1 + 2 * d))
            if part == 1: a("s_mov_b64 exec, 0x3ffffff")
            for k in range(2 * part, 2 * part + 2):
                a("buffer_store_dwordx2 %s, v%d, s[20:23], 0 offen" % (vr(176 + 2 * k, 2), 14 + k))
        a("s_mov_b64 exec, -1")
        a("s_waitcnt vmcnt(0)")
        a("s_branch L_red")
        a.label("L_fin")
        stamp()
    if cfg.stamps:
        a("s_mov_b32 s44, s46")
        a("s_mov_b32 s45, s47")
        a("s_mov_b32 s46, 0x10000000")
        a("s_mov_b32 s47, 0x20000")
        a("s_mul_i32 s9, s2, %d" % (NSTAMP * 8))
        a("s_add_u32 s9, s9, %d" % STAMPOFF)
        a("v_mov_b32 v4, s9")
        a("v_cmp_eq_u32 vcc, 0, v0")
        a("s_and_saveexec_b64 s[10:11], vcc")
        a("s_cbranch_execz L_end")
        assert nst[0] <= 16, nst[0]
        for i in range(NSTAMP):
            k = min(i, nst[0] - 1)
            a("v_mov_b32 v6, s%d" % (64 + 2 * k))
            a("v_mov_b32 v7, s%d" % (65 + 2 * k))
            a("buffer_store_dwordx2 v[6:7], v4, s[44:47], 0 offen offset:%d" % (i * 8))
    a.label("L_end")
    a("s_endpgm")
    main_end = len(a.lines)
    for n, rt in chk_sites:
        a.label("L_slow%d" % n)
        a("s_call_b64 s[60:61], L_fix%d" % rt)
        a("s_branch L_back%d" % n)
    for rt in range(5):
        a.label("L_fix%d" % rt)
        S = V_S + rt * 8
        a("s_nop 7")
        a("v_max3_f32 v20, v%d, v%d, v%d" % (S, S + 1, S + 2))
        a("v_max3_f32 v20, v20, v%d, v%d" % (S + 3, S + 4))
        a("v_max3_f32 v20, v20, v%d, v%d" % (S + 5, S + 6))
        a("v_max_f32 v20, v20, v%d" % (S + 7))
        a("v_mov_b32 v21, v20")
        a("s_nop 1")
        a("v_permlane32_swap_b32 v20, v21")
        a("v_max_f32 v20, v20, v21")
        a("v_mov_b32 v21, v20")
        a("s_nop 1")
        a("v_permlane16_swap_b32 v20, v21")
        a("v_max_f32 v20, v20, v21")
        a("v_add_f32 v20, 0x%08x, v20" % f32bits(cfg.BIAS))
        a("v_max_f32 v20, 0, v20")
        for r in range(4):
            a("v_sub_f32 v%d, v%d, v20" % (V_NM + rt * 4 + r, V_NM + rt * 4 + r))
        for t in range(8):
            a("v_sub_f32 v%d, v%d, v20" % (V_E + t, S + t))
        for t in range(8):
            a("v_exp_f32 v%d, v%d" % (V_E + t, V_E + t))
        a("v_exp_f32 v21, -v20")
        for t in range(4):
            a("v_cvt_pk_bf16_f32 v%d, v%d, v%d" % (V_P + rt * 4 + t, V_E + 2 * t, V_E + 2 * t + 1))
        regs_v = [V_O + (i * 5 + rt) * 4 + r for i in range(4) for r in range(4)]
        regs_a = [A_O + (i * 5 + rt) * 4 + r for i in range(4) for r in range(4)] + [A_L + rt * 4 + r for r in range(4)]
        for r in regs_v: a("v_mul_f32 v%d, v%d, v21" % (r, r))
        for k in range(0, 20, 4):
            for q in range(4): a("v_accvgpr_read_b32 v%d, a%d" % (V_E + q, regs_a[k + q]))
            for q in range(4): a("v_mul_f32 v%d, v%d, v21" % (V_E + q, V_E + q))
            for q in range(4): a("v_accvgpr_write_b32 a%d, v%d" % (regs_a[k + q], V_E + q))
        a("s_nop 1")
        a("s_setpc_b64 s[60:61]")
    a.label("L_code_end")
    L = a.lines
    i_last = max(i for i, l in enumerate(L) if l.strip() == "s_cbranch_scc1 L_last")
    probs = hazard.check(L[:loop_end] + L[loop_start:i_last + 1] + L[loop_end:main_end], "main") + hazard.check(L[main_end:], "ool")
    for p in probs: print("HAZARD", p)
    return a.text()

from gen import gen_reduce

def build(cfg):
    if cfg.fuse:
        k1 = dict(name=NAME + "_kernel", grid=256, block=256, lds=160 * 1024, body=gen_main(cfg, NAME + "_kernel"), vgpr=512, sgpr=96, accum=256)
        return build_file([k1])
    k1 = dict(name="gqa_main_kernel", grid=256, block=256, lds=160 * 1024, body=gen_main(cfg, "gqa_main_kernel"), vgpr=512, sgpr=96, accum=256)
    k2 = dict(name="gqa_reduce_kernel", grid=480, block=192, lds=0, body=gen_reduce(cfg), vgpr=80, sgpr=24, accum=80)
    return build_file([k1, k2])

if __name__ == "__main__":
    cfg = Cfg()
    out = sys.argv[1] if len(sys.argv) > 1 else "k.s"
    for kv in sys.argv[2:]:
        k, v = kv.split("=")
        old = getattr(cfg, k)
        setattr(cfg, k, (v == "1") if isinstance(old, bool) else type(old)(v))
    open(out, "w").write(build(cfg))
```

```python
import sys, math, struct
from asmgen import *
import hazard

def f32bits(x):
    return struct.unpack("<I", struct.pack("<f", x))[0]

class Cfg:
    stamps = False
    cyc = False
    kv_flag = "nt"
    w_flag = "nt"
    wo_flag = ""
    st_flag = "sc1"
    ld2_flag = "sc1"
    BIAS = 7.0
    rot = True
    fuse = True
    codepf = True
    spin = 20000
    strip = ""
    dbgtime = False

SLOT = 32768
MB = 65536
INBOX = 23040
PART = 92160
STAMPOFF = 32 << 20
NSTAMP = 16

V_DMA = 4
V_KA = 8
V_VA = 12
V_T = 20
V_E = 24
V_P = 32
V_S = 52
V_NM = 92
V_O = 112
V_X = 192
A_O = 0
A_L = 80
A_K = 100
A_V = 132
A_Q = 164
A_ONE = 244

def vr(b, n=4): return "v[%d:%d]" % (b, b + n - 1)
def ar(b, n=4): return "a[%d:%d]" % (b, b + n - 1)
def Otile(i, rt):
    return vr(V_O + (i * 5 + rt) * 4) if i < 4 else ar(A_O + ((i - 4) * 5 + rt) * 4)
def slot_of(stage): return 2 + stage % 3

MFMA = "v_mfma_f32_16x16x32_bf16"

class VM:
    def __init__(self, a): self.a = a; self.q = []
    def issue(self, tag, n=1): self.q += [tag] * n
    def count(self, tags):
        idx = max([i for i, t in enumerate(self.q) if t in tags] + [-1])
        return len(self.q) - 1 - idx if idx >= 0 else None
    def wait(self, *tags):
        n = self.count(tags)
        if n is None: return
        n = min(n, 63)
        self.a("s_waitcnt vmcnt(%d)" % n)
        self.q = self.q[len(self.q) - n:] if n else []

def interleave(a, mf, fill, lead=0, tail=0, vm=None):
    tot = sum(f[1] for f in fill)
    n = len(mf)
    span = max(1, n - lead - tail)
    acc = 0.0; k = 0
    def emit(f):
        a(f[0])
        if len(f) > 2 and vm is not None: vm.issue(f[2])
    for i, m in enumerate(mf):
        a(m)
        if i < lead: continue
        target = tot * min(1.0, (i + 1 - lead) / float(span))
        while k < len(fill) and acc + fill[k][1] * 0.5 <= target + 1e-9:
            emit(fill[k]); acc += fill[k][1]; k += 1
    while k < len(fill):
        emit(fill[k]); k += 1

def gaps(a, mf, gapfill):
    for i, m in enumerate(mf):
        a(m)
        for l in gapfill.get(i, []): a(l)

def place(gf, start, groups):
    for k, g in enumerate(groups):
        gf.setdefault(start + k, []).extend(g)

def gen_main(cfg, kname):
    a = Asm()
    nst = [0]
    def stamp():
        if cfg.stamps:
            i = nst[0]; nst[0] += 1
            a("%s s[%d:%d]" % ("s_memtime" if cfg.cyc else "s_memrealtime", 64 + 2 * i, 65 + 2 * i))
            a("s_waitcnt lgkmcnt(0)")
    a("s_cmp_ge_u32 s2, 256")
    a("s_cbranch_scc1 L_end")
    stamp()
    a.c("decode work item: xcd = wg&7, j = wg>>3, grp = xcd*4 + (j>>3), b = j&7, branch = grp>>4, hkv = grp&15")
    a("""
    s_and_b32 s3, s2, 7
    s_lshr_b32 s4, s2, 3
    s_lshr_b32 s5, s4, 3
    s_lshl_b32 s3, s3, 2
    s_add_u32 s3, s3, s5
    s_and_b32 s4, s4, 7
    s_and_b32 s5, s3, 15
    s_lshr_b32 s3, s3, 4
    s_mul_i32 s6, s3, 40
    s_add_u32 s8, s0, s6
    s_addc_u32 s9, s1, 0
    s_load_dwordx2 s[16:17], s[8:9], 0
    s_load_dwordx2 s[20:21], s[8:9], 24
    s_load_dwordx2 s[12:13], s[8:9], 8
    s_load_dwordx2 s[44:45], s[8:9], 16
    s_load_dwordx2 s[24:25], s[8:9], 32
    s_load_dwordx2 s[28:29], s[0:1], 96
    v_lshrrev_b32 v4, 6, v0
    v_and_b32 v1, 63, v0
    v_readfirstlane_b32 s6, v4
    v_and_b32 v2, 15, v0
    v_lshrrev_b32 v3, 4, v1
    s_lshr_b32 s7, s6, 1
    s_and_b32 s8, s6, 1
    s_lshl_b32 s33, s6, 13
    """)
    vm = VM(a)
    if cfg.codepf:
        a.c("pull the kernel's own code into L2: one dword per 128-B line, 256 lanes x 128 B = 32 KB")
        a("s_getpc_b64 s[60:61]")
        a.label("L_pc0")
        a("s_and_b32 s61, s61, 0xffff")
        a("s_mov_b32 s62, L_code_end-L_pc0")
        a("s_mov_b32 s63, 0x20000")
        a("v_lshlrev_b32 v5, 7, v0")
        a("buffer_load_dword v255, v5, s[60:63], 0 offen")
        vm.issue("pf")
    a.c("s3=branch s4=b s5=hkv s6=wave s7=qh s8=kh s33=wave*8192")
    a.c("rotated pair index table s[48:56] = ((rot + i) mod 9)")
    if cfg.rot: a("s_mov_b32 s48, s4")
    else: a("s_mov_b32 s48, 0")
    a("s_add_u32 s49, s48, 1")
    a.c("x DMA voffsets: v24 (rt = qh, +2 via soffset), v25 (rt = 4); wq DMA voffsets v26 (even piece) v27 (odd piece)")
    a("""
    v_lshrrev_b32 v20, 3, v1
    v_lshrrev_b32 v21, 1, v20
    s_lshl_b32 s9, s8, 2
    v_xor_b32 v21, s9, v21
    v_and_b32 v22, 7, v1
    v_xor_b32 v21, v21, v22
    s_lshl_b32 s9, s8, 3
    v_add_u32 v26, s9, v20
    v_mul_u32_u24 v26, 1152, v26
    v_lshl_add_u32 v26, v21, 4, v26
    s_mul_i32 s9, s7, 18432
    v_add_u32 v24, s9, v26
    v_add_u32 v25, %d, v26
    v_and_b32 v21, 2, v20
    v_xor_b32 v21, v21, v22
    v_lshlrev_b32 v26, 13, v20
    v_xor_b32 v27, 4, v21
    v_lshl_add_u32 v27, v27, 4, v26
    v_lshl_add_u32 v26, v21, 4, v26
    s_lshl_b32 s57, s7, 11
    s_lshl_b32 s9, s8, 10
    s_add_u32 s57, s57, s9
    s_add_u32 s58, s9, 8192
    s_mul_i32 s9, s4, 92160
    s_lshl_b32 s11, s5, 9
    s_lshl_b32 s10, s6, 7
    s_add_u32 s11, s11, s10
    s_mov_b32 s18, 92160
    s_mov_b32 s19, 0x20000
    s_sub_u32 s22, %d, s11
    s_mov_b32 s23, 0x20000
    s_waitcnt lgkmcnt(0)
    s_add_u32 s16, s16, s9
    s_addc_u32 s17, s17, 0
    s_and_b32 s17, s17, 0xffff
    s_add_u32 s20, s20, s11
    s_addc_u32 s21, s21, 0
    s_and_b32 s21, s21, 0xffff
    """ % (4 * 18432, 576 * 8192))
    XSLOT = [slot_of(0), slot_of(1), slot_of(2)]
    def xbase(p): return XSLOT[p // 3] * SLOT + (p % 3) * 10240
    def x_issue(p):
        tag = "x%d" % p
        b = xbase(p)
        return [
            ("s_lshl_b32 s10, s%d, 7\ns_add_u32 m0, s57, %d\ns_add_u32 s11, s10, 36864\nbuffer_load_dwordx4 v24, s[16:19], s10 offen %s lds" % (48 + p, b, cfg.w_flag), 16, tag),
            ("s_add_u32 m0, s57, %d\ns_nop 0\nbuffer_load_dwordx4 v24, s[16:19], s11 offen %s lds" % (b + 4096, cfg.w_flag), 12, tag),
            ("s_add_u32 m0, s58, %d\ns_nop 0\nbuffer_load_dwordx4 v25, s[16:19], s10 offen %s lds" % (b, cfg.w_flag), 12, tag)]
    def went(ks):
        e = ks % 4
        return (e >> 1) * SLOT + (e & 1) * 4096
    def wq_issue(ks):
        tag = "wq%d" % ks
        out = []
        for j in range(4):
            pre = ""
            if j == 0:
                pre = "s_lshl_b32 s9, s%d, 19\ns_add_u32 m0, s33, %d\n" % (48 + ks // 2, went(ks))
            out.append((pre + "s_add_u32 s59, s9, %d\nbuffer_load_dwordx4 v%d, s[20:23], s59 offen offset:%d %s lds" % (
                (ks & 1) * 262144 + j * (65536 - 1024), 26 + (j & 1), j * 1024, cfg.w_flag), 16 if j == 0 else 8, tag))
        return out
    def emit(lst):
        for f in lst:
            a(f[0])
            if len(f) > 2: vm.issue(f[2])
    emit(x_issue(0)); emit(wq_issue(0)); emit(wq_issue(1)); emit(x_issue(1))
    for i in range(2, 9):
        a("s_add_u32 s%d, s%d, 1" % (48 + i, 47 + i))
        a("s_cmp_eq_u32 s%d, 9" % (48 + i))
        a("s_cselect_b32 s%d, 0, s%d" % (48 + i, 48 + i))
    a.c("x fragment read addresses: c*128 + (((4*(ks&1) + g) ^ (c>>1)) << 4): v28/v29 (+64K), v30/v31 (+128K)")
    a("""
    v_lshrrev_b32 v21, 1, v2
    v_xor_b32 v21, v21, v3
    v_lshlrev_b32 v22, 7, v2
    v_add_u32 v22, 0x10000, v22
    v_lshl_add_u32 v28, v21, 4, v22
    v_xor_b32 v21, 4, v21
    v_lshl_add_u32 v29, v21, 4, v22
    v_add_u32 v30, 0x10000, v28
    v_add_u32 v31, 0x10000, v29
    """)
    a.c("wq fragment read addresses v32..v35 (tile i): wave*8192 + g*1024 + r*128 + ((i ^ ((r>>1) | ((g&1)<<1))) << 5) + cc*8")
    a("""
    v_lshrrev_b32 v21, 2, v2
    v_lshlrev_b32 v22, 7, v21
    v_lshl_add_u32 v22, v3, 10, v22
    v_and_b32 v23, 3, v2
    v_lshl_add_u32 v22, v23, 3, v22
    v_add_u32 v22, s33, v22
    v_lshrrev_b32 v21, 1, v21
    v_and_b32 v23, 1, v3
    v_lshl_or_b32 v21, v23, 1, v21
    """)
    for i in range(4):
        a("v_xor_b32 v23, %d, v21" % i)
        a("v_lshl_add_u32 v%d, v23, 5, v22" % (32 + i))
    a.c("K/V DMA SRD (waves 0,1: K ; waves 2,3: V)")
    a("""
    s_cmp_eq_u32 s7, 0
    s_cselect_b32 s12, s12, s44
    s_cselect_b32 s13, s13, s45
    s_lshl_b32 s9, s4, 4
    s_add_u32 s9, s9, s5
    s_lshl_b32 s9, s9, 18
    s_add_u32 s12, s12, s9
    s_addc_u32 s13, s13, 0
    s_and_b32 s13, s13, 0xffff
    s_mov_b32 s14, 262144
    s_mov_b32 s15, 0x20000
    v_lshlrev_b32 v21, s7, v3
    v_xor_b32 v21, v21, v2
    s_cmp_eq_u32 s7, 0
    s_cselect_b32 s9, 4, 8
    s_cselect_b32 s10, 8, 0
    s_cselect_b32 s11, 12, 8
    v_lshlrev_b32 v22, 8, v3
    v_lshl_add_u32 v4, v21, 4, v22
    v_xor_b32 v23, s9, v21
    v_lshl_add_u32 v5, v23, 4, v22
    v_xor_b32 v23, s10, v21
    v_lshl_add_u32 v6, v23, 4, v22
    v_xor_b32 v23, s11, v21
    v_lshl_add_u32 v7, v23, 4, v22
    s_lshl_b32 s32, s8, 13
    """)
    def kv_issue(stage):
        out = []
        tag = "kv%d" % stage
        for h in range(2):
            for j in range(4):
                pre = ""
                if j == 0:
                    pre = "s_add_u32 m0, s33, %d\ns_add_u32 s59, s32, %d\n" % (slot_of(stage) * SLOT + h * 4096, stage * 16384 + h * 4096)
                out.append((pre + "buffer_load_dwordx4 v%d, s[12:15], s59 offen offset:%d %s lds" % (V_DMA + j, j * 1024, cfg.kv_flag), 16 if j == 0 else 8, tag))
        return out
    a.c("wo / ws SRDs ; s[46:47] = ws base")
    cs = f32bits(math.log2(math.e) / math.sqrt(128.0))
    a("""
    s_mul_i32 s9, s5, 294912
    s_add_u32 s24, s24, s9
    s_addc_u32 s25, s25, 0
    s_and_b32 s25, s25, 0xffff
    s_mov_b32 s26, 294912
    s_mov_b32 s27, 0x20000
    s_mov_b32 s46, s28
    s_and_b32 s47, s29, 0xffff
    s_lshl_b32 s9, s3, 3
    s_add_u32 s39, s9, s4
    s_mul_i32 s9, s39, %d
    s_add_u32 s28, s28, s9
    s_addc_u32 s29, s29, 0
    s_and_b32 s29, s29, 0xffff
    s_mov_b32 s30, %d
    s_mov_b32 s31, 0x20000
    s_mul_i32 s42, s5, %d
    s_mov_b32 s38, 0x40004000
    s_mov_b32 s40, 0x%08x
    s_mov_b32 s41, 0x%08x
    """ % (16 * PART, 16 * PART, PART, cs, cs))
    a.c("s39 = group (branch*8+b) ; s[28:31] = the group's 16 partials ; s42 = own partial offset")
    a.c("K read addresses (stage 0): kh*8192 + c*256 + (((4ks + g) ^ c) << 4)")
    a("""
    v_xor_b32 v21, v3, v2
    s_lshl_b32 s9, s8, 13
    s_add_u32 s9, s9, %d
    v_lshlrev_b32 v22, 8, v2
    v_add_u32 v22, s9, v22
    """ % (slot_of(0) * SLOT))
    for ks in range(4):
        a("v_xor_b32 v23, %d, v21" % (4 * ks))
        a("v_lshl_add_u32 v%d, v23, 4, v22" % (V_KA + ks))
    a.c("V read addresses")
    a("""
    v_lshrrev_b32 v21, 2, v2
    v_lshl_add_u32 v22, v3, 2, v21
    v_and_b32 v21, 7, v22
    v_lshlrev_b32 v22, 8, v22
    v_and_b32 v23, 3, v2
    v_lshl_add_u32 v22, v23, 3, v22
    s_add_u32 s9, s9, 16384
    v_add_u32 v22, s9, v22
    s_lshl_b32 s10, s8, 2
    v_xor_b32 v21, s10, v21
    """)
    for i in range(8):
        a("v_xor_b32 v23, %d, v21" % i)
        a("v_lshl_add_u32 v%d, v23, 5, v22" % (V_VA + i))
    a("s_mov_b32 s9, 0x3f803f80")
    for i in range(4): a("v_accvgpr_write_b32 a%d, s9" % (A_ONE + i))
    a.c("wo DMA voffset v23 ; merge addresses v[192:195] ; Q exchange addresses v196 (write) v197 (read)")
    a("""
    v_lshrrev_b32 v21, 3, v1
    v_mul_u32_u24 v23, 1152, v21
    v_and_b32 v21, 6, v21
    v_and_b32 v22, 7, v1
    v_xor_b32 v21, v21, v22
    v_lshl_add_u32 v23, v21, 4, v23
    s_mul_i32 s35, s6, %d
    s_xor_b32 s9, s6, 1
    s_mul_i32 s9, s9, %d
    s_add_u32 s9, s9, %d
    s_mul_i32 s10, s6, %d
    s_add_u32 s10, s10, %d
    v_lshlrev_b32 v20, 4, v1
    v_add_u32 v192, s9, v20
    v_add_u32 v193, s10, v20
    v_lshlrev_b32 v22, 2, v1
    v_add_u32 v194, s9, v22
    v_add_u32 v195, s10, v22
    v_lshrrev_b32 v21, 1, v3
    v_lshl_add_u32 v21, v21, 4, v2
    v_lshlrev_b32 v21, 4, v21
    v_and_b32 v22, 1, v3
    v_lshl_add_u32 v21, v22, 3, v21
    s_mul_i32 s9, s7, 20480
    s_lshl_b32 s10, s8, 11
    s_add_u32 s10, s10, s9
    v_add_u32 v196, s10, v21
    v_add_u32 v197, s9, v20
    s_mov_b32 s34, 0
    s_mov_b32 s44, %d
    s_mov_b32 s45, 0x10000
    """ % (8 * 9216, INBOX, MB, INBOX, MB, slot_of(0) * SLOT))
    emit(wq_issue(2)); emit(wq_issue(3)); emit(x_issue(2))
    a.c("zero the accumulators kept in AGPRs")
    for r in range(100): a("v_accvgpr_write_b32 a%d, 0" % r)
    XF = [100, 120]
    WF = [140, 156]
    def x_reads(ks):
        out = []
        b = xbase(ks // 2)
        reg, off = (28, b - 0x10000) if b < 0x20000 else (30, b - 0x20000)
        for rt in range(5):
            out.append(("ds_read_b128 %s, v%d offset:%d" % (ar(XF[ks & 1] + rt * 4), reg + (ks & 1), off + rt * 2048), 4))
        return out
    def w_reads(ks):
        out = []
        off = went(ks)
        for i in range(4):
            for h in range(2):
                out.append(("ds_read_b64_tr_b16 %s, v%d offset:%d" % (ar(WF[ks & 1] + i * 4 + 2 * h, 2), 32 + i, off + h * 512), 4))
        return out
    vm.wait("x0", "wq0")
    a("s_barrier")
    stamp()
    emit(w_reads(0)); emit(x_reads(0))
    kvq = kv_issue(0) + kv_issue(1)
    def qconv(rt):
        out = []
        for i in range(4):
            b = V_O + (i * 5 + rt) * 4
            out.append("v_pk_mul_f32 %s, %s, s[40:41]" % (vr(b, 2), vr(b, 2)))
            out.append("v_pk_mul_f32 %s, %s, s[40:41]" % (vr(b + 2, 2), vr(b + 2, 2)))
        for i in range(4):
            b = V_O + (i * 5 + rt) * 4
            d = 36 + (rt * 4 + i) * 2
            out.append("v_cvt_pk_bf16_f32 v%d, v%d, v%d" % (d, b, b + 1))
            out.append("v_cvt_pk_bf16_f32 v%d, v%d, v%d" % (d + 1, b + 2, b + 3))
            out.append("ds_write_b64 v196, %s offset:%d" % (vr(d, 2), rt * 4096 + (i >> 1) * 1024 + (i & 1) * 512))
        return out
    for ks in range(18):
        mf = []
        for rt in range(5):
            for i in range(4):
                acc = vr(V_O + (i * 5 + rt) * 4)
                mf.append("%s %s, %s, %s, %s" % (MFMA, acc, ar(WF[ks & 1] + i * 4), ar(XF[ks & 1] + rt * 4), "0" if ks == 0 else acc))
        need = []
        if ks + 1 < 18: need.append("wq%d" % (ks + 1))
        bar = ks in (1, 5, 11, 17)
        if ks == 1: need += ["x1", "x2"]
        if ks == 5: need += ["x%d" % p for p in range(3, 9)]
        if cfg.stamps and ks in (6,): stamp()
        vm.wait(*need)
        a("s_waitcnt lgkmcnt(0)")
        if bar: a("s_barrier")
        dma = []
        if ks + 4 < 18: dma += wq_issue(ks + 4)
        if ks < 3: dma += x_issue(3 + 2 * ks) + x_issue(4 + 2 * ks)
        if ks in (14, 15, 16): dma += kvq[(ks - 14) * 4:(ks - 13) * 4]
        if ks < 17:
            rd = w_reads(ks + 1) + x_reads(ks + 1)
            interleave(a, mf[:9], rd, vm=vm)
            interleave(a, mf[9:], dma, vm=vm, tail=1)
        else:
            gf = {}
            c0 = qconv(0)
            place(gf, 10, [c0[0:2], c0[2:4], c0[4:6], c0[6:8], c0[8:10], c0[10:12], c0[12:14], c0[14:16], c0[16:18], c0[18:20]])
            gaps(a, mf, gf)
    stamp()
    for rt in range(1, 5):
        for l in qconv(rt): a(l)
    emit(kvq[12:16])
    for r in range(V_O, V_O + 80, 2): a("v_mov_b64 %s, 0" % vr(r, 2))
    vm.wait("kv0")
    a("s_waitcnt lgkmcnt(0)")
    a("s_barrier")
    stamp()
    kreads = {}
    for ks in range(4):
        for kt in range(2):
            kreads[ks * 2 + kt] = "ds_read_b128 %s, v%d offset:%d" % (ar(A_K + (kt * 4 + ks) * 4), V_KA + ks, kt * 4096)
    vreads = {}
    for i in range(8):
        vreads[i] = ["ds_read_b64_tr_b16 %s, v%d offset:%d" % (ar(A_V + i * 4 + 2 * h, 2), V_VA + i, h * 4096) for h in range(2)]
    def QK(rt):
        out = []
        for ks in range(4):
            for kt in range(2):
                s = vr(V_S + rt * 8 + kt * 4)
                out.append("%s %s, %s, %s, %s" % (MFMA, s, ar(A_K + (kt * 4 + ks) * 4), ar(A_Q + (rt * 4 + ks) * 4),
                                                   vr(V_NM + rt * 4) if ks == 0 else s))
        return out
    def PV(rt):
        out = []
        for i in range(8):
            out.append("%s %s, %s, %s, %s" % (MFMA, Otile(i, rt), ar(A_V + i * 4), vr(V_P + rt * 4), Otile(i, rt)))
        out.append("%s %s, %s, %s, %s" % (MFMA, ar(A_L + rt * 4), ar(A_ONE), vr(V_P + rt * 4), ar(A_L + rt * 4)))
        return out
    def SM(rt):
        S = V_S + rt * 8; p = V_P + rt * 4; E = V_E
        ex = lambda t: "v_exp_f32 v%d, v%d" % (E + t, S + t)
        cv = lambda t: "v_cvt_pk_bf16_f32 v%d, v%d, v%d" % (p + t, E + 2 * t, E + 2 * t + 1)
        return [[ex(0)], [ex(1)], [ex(2)], [ex(3)], [ex(4)], [cv(0), cv(1)], [ex(5)], [ex(6)], [ex(7)],
                [cv(2), "v_or3_b32 v%d, v%d, v%d, v%d" % (V_T, p, p + 1, p + 2)],
                [cv(3), "v_bitop3_b32 v%d, v%d, v%d, s38 bitop3:0xa8" % (V_T, V_T, p + 3)],
                ["v_cmp_ne_u32 vcc, 0, v%d" % V_T]]
    nchk = [0]
    chk_sites = []
    def CHECK(rt):
        n = nchk[0]; nchk[0] += 1
        chk_sites.append((n, rt))
        return ["s_cbranch_vccnz L_slow%d" % n, "L_back%d:" % n]
    kadv = ["v_add_u32 v%d, s11, v%d" % (r, r) for r in range(V_KA, V_KA + 4)]
    vadv = ["v_add_u32 v%d, s11, v%d" % (r, r) for r in range(V_VA, V_VA + 8)]
    slotadv = ["s_mov_b32 s43, s44", "s_add_u32 s44, s44, %d" % SLOT, "s_cmp_eq_u32 s44, %d" % (5 * SLOT),
               "s_cselect_b32 s44, s45, s44", "s_sub_u32 s11, s44, s43"]
    for ks in range(4): a(kreads[2 * ks])
    for rt in range(5):
        for ks in range(4):
            a("ds_read_b128 %s, v197 offset:%d" % (ar(A_Q + (rt * 4 + ks) * 4), (rt * 4 + ks) * 1024))
    for ks in range(4): a(kreads[2 * ks + 1])
    k2 = kv_issue(2)
    mf = []
    gf = {}
    for rt in range(5):
        s = vr(V_S + rt * 8)
        for ks in range(4):
            mf.append("%s %s, %s, %s, %s" % (MFMA, s, ar(A_K + ks * 4), ar(A_Q + (rt * 4 + ks) * 4), "0" if ks == 0 else s))
    a("s_waitcnt lgkmcnt(12)")
    gf[7] = ["s_waitcnt lgkmcnt(4)"]
    for i in range(8): gf.setdefault(8 + i, []).extend(vreads[i])
    gaps(a, mf, gf)
    for l in slotadv: a(l)
    for l in kadv: a(l)
    for rt in range(5):
        S = V_S + rt * 8
        a("v_max3_f32 v%d, v%d, v%d, v%d" % (S, S, S + 1, S + 2))
    for rt in range(5):
        S = V_S + rt * 8
        a("v_max_f32 v%d, v%d, v%d" % (S, S, S + 3))
    for swap in ("v_permlane32_swap_b32", "v_permlane16_swap_b32"):
        for rt in range(5):
            S = V_S + rt * 8
            a("v_mov_b32 v%d, v%d" % (S + 1, S))
        for rt in range(5):
            S = V_S + rt * 8
            if rt == 0: a("s_nop 0")
            a("%s v%d, v%d" % (swap, S, S + 1))
        for rt in range(5):
            S = V_S + rt * 8
            a("v_max_f32 v%d, v%d, v%d" % (S, S, S + 1))
    for rt in range(5):
        S = V_S + rt * 8
        a("v_sub_f32 v%d, 0x%08x, v%d" % (V_NM + rt * 4, f32bits(-cfg.BIAS), S))
    for rt in range(5):
        for r in range(1, 4):
            a("v_mov_b32 v%d, v%d" % (V_NM + rt * 4 + r, V_NM + rt * 4))
    a("s_waitcnt lgkmcnt(0)")
    gf = {}
    for k in range(8): gf.setdefault(k, []).extend(k2[k][0].split("\n"))
    gaps(a, QK(0), gf)
    a("s_add_u32 s32, s32, %d" % (3 * 16384))
    gf = {}
    sm = SM(0)
    place(gf, 3, [sm[0] + sm[1], sm[2] + sm[3], sm[4] + sm[5], sm[6] + sm[7], sm[8] + sm[9] + sm[10] + sm[11]])
    gaps(a, QK(1), gf)
    for l in CHECK(0): a(l)
    ndma = [0]
    def dma1(h, j):
        n = ndma[0]; ndma[0] += 1
        return ["s_cbranch_scc1 L_nd%d" % n,
                "buffer_load_dwordx4 v%d, s[12:15], %s offen offset:%d %s lds" % (V_DMA + j, "s32" if h == 0 else "s10", j * 1024, cfg.kv_flag),
                "L_nd%d:" % n]
    stamp()
    loop_start = len(a.lines)
    a.label("L_loop")
    if cfg.stamps:
        for it in (1, 13):
            a("s_cmp_eq_u32 s34, %d" % it)
            a("s_cbranch_scc0 L_ns%d" % it)
            stamp()
            a.label("L_ns%d" % it)
    gf = {}
    place(gf, 0, SM(1))
    gf.setdefault(7, []).append("s_waitcnt lgkmcnt(0)")
    place(gf, 12, [vadv[0:2], vadv[2:4], vadv[4:6], vadv[6:8]])
    gf.setdefault(15, []).extend(CHECK(1))
    gaps(a, QK(2) + PV(0), gf)
    gf = {}
    place(gf, 0, SM(2))
    gf.setdefault(12, []).extend(["s_add_u32 s9, s33, s43", "s_mov_b32 m0, s9"])
    gf.setdefault(13, []).extend(["s_add_u32 s10, s32, 4096", "s_add_u32 s9, s9, 4096"])
    gf.setdefault(14, []).extend(CHECK(2))
    gf.setdefault(15, []).extend(["s_cmp_eq_u32 s34, 15"])
    gf.setdefault(16, []).extend(["s_cbranch_scc1 L_last", "s_waitcnt vmcnt(8)"])
    gaps(a, QK(3) + PV(1), gf)
    a("s_barrier")
    gf = {}
    for k in range(8): gf[k] = [kreads[k]]
    gf[0].append("s_cmp_ge_u32 s34, 13")
    for k in range(4): gf[k].extend(dma1(0, k))
    place(gf, 4, SM(3))
    gf.setdefault(16, []).extend(CHECK(3))
    gaps(a, QK(4) + PV(2), gf)
    a("s_waitcnt lgkmcnt(0)")
    gf = {}
    place(gf, 0, SM(4))
    gf.setdefault(11, []).extend(["s_mov_b32 m0, s9"])
    gf.setdefault(12, []).extend(["s_add_u32 s32, s32, 16384", "s_cmp_ge_u32 s34, 13"])
    for k in range(4): gf.setdefault(12 + k, []).extend(dma1(1, k))
    gf.setdefault(16, []).extend(CHECK(4))
    gaps(a, QK(0) + PV(3), gf)
    gf = {}
    place(gf, 0, SM(0))
    for i in range(8): gf.setdefault(8 + i, []).extend(vreads[i])
    gf.setdefault(12, []).extend(slotadv[:3])
    gf.setdefault(13, []).extend(slotadv[3:])
    gf.setdefault(14, []).extend(kadv[:2])
    gf.setdefault(15, []).extend(kadv[2:])
    gf.setdefault(16, []).extend(CHECK(0) + ["s_add_u32 s34, s34, 1", "s_cmp_lt_u32 s34, 14"])
    gaps(a, QK(1) + PV(4), gf)
    a("s_cbranch_scc1 L_loop")
    a.c("K/V stream finished: prefetch wo column groups 0,1 (rotated order) into slots 0,1")
    a("""
    s_sub_u32 s9, s34, 14
    s_add_u32 s10, s9, s48
    s_lshl_b32 s10, s10, 7
    s_add_u32 s10, s10, s35
    s_lshl_b32 s9, s9, 15
    s_add_u32 s9, s9, s33
    """)
    for h in range(2):
        a("s_add_u32 m0, s9, %d" % (h * 4096))
        for j in range(4):
            a("s_add_u32 s59, s10, %d" % ((h * 4 + j) * 9216 - j * 1024))
            a("buffer_load_dwordx4 v23, s[24:27], s59 offen offset:%d %s lds" % (j * 1024, cfg.wo_flag))
    a("s_branch L_loop")
    if cfg.strip:
        body = a.lines[loop_start:]
        def keep(l):
            t = l.strip()
            if "d" in cfg.strip and (t.startswith("buffer_load") or t.startswith("s_cbranch_scc1 L_nd") or "vmcnt" in t): return False
            if "b" in cfg.strip and t.startswith("s_barrier"): return False
            if "e" in cfg.strip and t.startswith("v_exp"): return False
            if "v" in cfg.strip and t.startswith(("v_cvt", "v_or3", "v_bitop3", "v_add_u32")): return False
            if "c" in cfg.strip and t.startswith(("v_cmp", "s_cbranch_vccnz")): return False
            if "l" in cfg.strip and (t.startswith("ds_read")): return False
            return True
        a.lines = a.lines[:loop_start] + [l for l in body if keep(l)]
    loop_end = len(a.lines)
    a.label("L_last")
    a("s_barrier")
    def mwrites(rt):
        out = ["ds_write_b128 v192, %s offset:%d" % (Otile(4 + i, rt), (rt * 4 + i) * 1024) for i in range(4)]
        out.append("ds_write_b32 v194, v%d offset:%d" % (V_NM + rt * 4, 20480 + rt * 256))
        out.append("ds_write_b32 v194, a%d offset:%d" % (A_L + rt * 4, 20480 + (5 + rt) * 256))
        out.append("v_accvgpr_read_b32 v%d, a%d" % (V_NM + rt * 4 + 1, A_L + rt * 4))
        return out
    gf = {}
    place(gf, 0, SM(3))
    w = mwrites(0) + mwrites(1)
    for k, l in enumerate(w): gf.setdefault(k + 2, []).append(l)
    gf.setdefault(16, []).extend(CHECK(3))
    gaps(a, QK(4) + PV(2), gf)
    gf = {}
    sm = SM(4)
    place(gf, 0, [sm[0] + sm[1], sm[2], sm[3] + sm[4], sm[5], sm[6] + sm[7], sm[8], sm[9], sm[10], sm[11]])
    w = mwrites(2)
    for k, l in enumerate(w): gf.setdefault(k + 2, []).append(l)
    gf[8].extend(CHECK(4))
    gaps(a, PV(3), gf)
    a("s_nop 0")
    gf = {}
    w = mwrites(3)
    place(gf, 4, [w[0:1], w[1:2], w[2:3], w[3:5], w[5:7]])
    ad = """v_lshrrev_b32 v26, 2, v2
    v_and_b32 v27, 1, v3
    v_lshl_add_u32 v26, v27, 2, v26
    v_lshrrev_b32 v27, 1, v26
    v_xor_b32 v27, s6, v27
    v_lshlrev_b32 v25, 7, v26
    v_lshl_add_u32 v25, v27, 5, v25
    v_and_b32 v27, 3, v2
    v_lshl_add_u32 v25, v27, 3, v25
    v_lshrrev_b32 v27, 1, v3
    v_lshl_add_u32 v25, v27, 10, v25
    v_add_u32 v26, 0x10000, v25
    v_add_u32 v27, 0x20000, v25""".split("\n")
    place(gf, 0, [ad[0:2], ad[2:4], ad[4:6], ad[6:8]])
    gaps(a, PV(4), gf)
    for l in ad[8:]: a(l)
    a("s_nop 2")
    for l in mwrites(4): a(l)
    stamp()
    a("s_waitcnt lgkmcnt(0)")
    a("s_barrier")
    for rt in range(5):
        a("ds_read_b32 v%d, v195 offset:%d" % (52 + rt, 20480 + rt * 256))
        a("ds_read_b32 v%d, v195 offset:%d" % (57 + rt, 20480 + (5 + rt) * 256))
    def IN(rt, i):
        n = rt * 4 + i
        return (200 + n * 4) if n < 14 else (32 + (n - 14) * 4) if n < 19 else 62
    inreads = ["ds_read_b128 %s, v193 offset:%d" % (vr(IN(rt, i)), (rt * 4 + i) * 1024) for rt in range(5) for i in range(4)]
    for l in inreads[:4]: a(l)
    a("s_waitcnt lgkmcnt(4)")
    BO, BT = 66, 76
    st = []
    for rt in range(5):
        nm = V_NM + rt * 4
        st.append("v_min_f32 v%d, v%d, v%d" % (nm + 2, nm, 52 + rt))
        st.append("v_sub_f32 v%d, v%d, v%d" % (nm, nm + 2, nm))
        st.append("v_sub_f32 v%d, v%d, v%d" % (52 + rt, nm + 2, 52 + rt))
    for rt in range(5):
        nm = V_NM + rt * 4
        st.append("v_exp_f32 v%d, v%d" % (nm, nm))
        st.append("v_exp_f32 v%d, v%d" % (52 + rt, 52 + rt))
    for rt in range(5):
        nm = V_NM + rt * 4
        st.append("v_mul_f32 v%d, v%d, v%d" % (nm + 1, nm, nm + 1))
        st.append("v_fmac_f32 v%d, v%d, v%d" % (nm + 1, 52 + rt, 57 + rt))
    for rt in range(5):
        nm = V_NM + rt * 4
        st.append("v_rcp_f32 v%d, v%d" % (nm + 1, nm + 1))
    for rt in range(5):
        nm = V_NM + rt * 4
        st.append("v_mul_f32 v%d, v%d, v%d" % (BO + 2 * rt, nm, nm + 1))
        st.append("v_mul_f32 v%d, v%d, v%d" % (BT + 2 * rt, 52 + rt, nm + 1))
    rest = inreads[4:]
    for k, l in enumerate(st):
        a(l)
        if k % 2 == 0 and rest: a(rest.pop(0))
    for l in rest: a(l)
    for rt in range(5):
        for i in range(4):
            o = V_O + (i * 5 + rt) * 4
            for h in range(2):
                a("v_pk_mul_f32 %s, %s, %s op_sel_hi:[1,0]" % (vr(o + 2 * h, 2), vr(o + 2 * h, 2), vr(BO + 2 * rt, 2)))
    a("s_waitcnt lgkmcnt(0)")
    for rt in range(5):
        for i in range(4):
            o = V_O + (i * 5 + rt) * 4
            for h in range(2):
                a("v_pk_fma_f32 %s, %s, %s, %s op_sel_hi:[1,0,1]" % (vr(o + 2 * h, 2), vr(IN(rt, i) + 2 * h, 2), vr(BT + 2 * rt, 2), vr(o + 2 * h, 2)))
        for e in range(2):
            d = 92 + ((rt * 2 + e) % 4) * 4
            for t in range(4):
                o = V_O + ((2 * e + (t >> 1)) * 5 + rt) * 4 + 2 * (t & 1)
                a("v_cvt_pk_bf16_f32 v%d, v%d, v%d" % (d + t, o, o + 1))
            a("ds_write_b128 v193, %s offset:%d" % (vr(d), (e * 5 + rt) * 1024))
    a("""
    v_lshlrev_b32 v20, 4, v1
    v_add_u32 v21, %d, v20
    s_mul_i32 s9, s6, 2560
    s_add_u32 s9, s9, s42
    v_add_u32 v28, s9, v20
    v_add_u32 v20, %d, v20
    v_lshlrev_b32 v29, 3, v1
    v_add_u32 v29, s9, v29
    s_waitcnt vmcnt(0) lgkmcnt(0)
    s_barrier
    """ % (MB + 2 * INBOX, MB))
    stamp()
    A_OF = 0
    A_WF = [160, 192]
    V_ACC = [32, 52]
    V_ST = [72, 84]
    def wf_reads(cg):
        slot = cg % 5
        reg, off = 25 + (slot >> 1), (slot & 1) * SLOT
        out = []
        for kk in range(8):
            for h in range(2):
                out.append(("ds_read_b64_tr_b16 %s, v%d offset:%d" % (ar(A_WF[cg & 1] + kk * 4 + 2 * h, 2), reg, off + kk * 4096 + h * 2048), 4))
        return out
    def wo_issue(cg):
        slot = cg % 5
        out = []
        tag = "wo%d" % cg
        for h in range(2):
            for j in range(4):
                pre = ""
                if j == 0:
                    pre = "s_add_u32 m0, s33, %d\n" % (slot * SLOT + h * 4096)
                    pre += "s_lshl_b32 s9, s%d, 7\ns_add_u32 s9, s9, s35\n" % (48 + cg)
                out.append((pre + "s_add_u32 s10, s9, %d\nbuffer_load_dwordx4 v23, s[24:27], s10 offen offset:%d %s lds" % (
                    (h * 4 + j) * 9216 - j * 1024, j * 1024, cfg.wo_flag), 12, tag))
        return out
    vm = VM(a)
    def of_reads(kk):
        w = kk >> 1
        reg, off = (20, w * INBOX) if w < 2 else (21, (w - 2) * INBOX)
        return ["ds_read_b128 %s, v%d offset:%d" % (ar(A_OF + (kk * 5 + rt) * 4), reg, off + ((kk & 1) * 5 + rt) * 1024) for rt in range(5)]
    def stores(cg):
        acc = V_ACC[cg & 1]; st = V_ST[cg & 1]
        out = []
        for rt in range(5):
            out.append(("v_cvt_pk_bf16_f32 v%d, v%d, v%d" % (st + 2 * rt, acc + rt * 4, acc + rt * 4 + 1), 4))
            out.append(("v_cvt_pk_bf16_f32 v%d, v%d, v%d" % (st + 2 * rt + 1, acc + rt * 4 + 2, acc + rt * 4 + 3), 4))
        out.append(("s_mul_i32 s11, s%d, 10240" % (48 + cg), 4))
        out.append(("buffer_store_dwordx4 %s, v28, s[28:31], s11 offen %s" % (vr(st), cfg.st_flag), 8, "st"))
        out.append(("buffer_store_dwordx4 %s, v28, s[28:31], s11 offen offset:1024 %s" % (vr(st + 4), cfg.st_flag), 8, "st"))
        out.append(("buffer_store_dwordx2 %s, v29, s[28:31], s11 offen offset:2048 %s" % (vr(st + 8, 2), cfg.st_flag), 8, "st"))
        return out
    for cg in range(9):
        mf = []
        for kk in range(8):
            for rt in range(5):
                acc = vr(V_ACC[cg & 1] + rt * 4)
                mf.append("%s %s, %s, %s, %s" % (MFMA, acc, ar(A_WF[cg & 1] + kk * 4), ar(A_OF + (kk * 5 + rt) * 4), "0" if kk == 0 else acc))
        if cg == 0:
            wf = [f[0] for f in wf_reads(0)]
            for kk in range(2):
                a(wf[2 * kk]); a(wf[2 * kk + 1])
                for l in of_reads(kk): a(l)
            for kk in range(8):
                a("s_waitcnt lgkmcnt(%d)" % (7 if kk < 7 else 0))
                gf = {}
                if kk + 2 < 8:
                    r = [wf[2 * kk + 4], wf[2 * kk + 5]] + of_reads(kk + 2)
                    place(gf, 0, [r[0:2], r[2:4], r[4:6], r[6:7]])
                gaps(a, mf[kk * 5:kk * 5 + 5], gf)
                if kk == 6:
                    pass
            a("s_barrier")
            emit(wf_reads(1))
            emit(wo_issue(2))
            emit(wo_issue(3)[:4])
            continue
        a("s_waitcnt lgkmcnt(0)")
        if cg in (1, 5): stamp()
        st = stores(cg - 1)
        if cg + 1 < 9:
            d1 = wo_issue(cg + 2)[4:] if cg + 2 < 9 else []
            d2 = wo_issue(cg + 3)[:4] if cg + 3 < 9 else []
            interleave(a, mf[:18], d1 + st, vm=vm, lead=1)
            vm.wait("wo%d" % (cg + 1))
            a("s_barrier")
            interleave(a, mf[18:], wf_reads(cg + 1) + d2, vm=vm, tail=3)
        else:
            interleave(a, mf, st, lead=3, vm=vm)
    a("s_nop 7")
    emit(stores(8))
    stamp()
    if cfg.fuse:
        a.c("publish: all stores drained, then one arrival on the group's word in d_debug")
        a("""
        s_load_dwordx2 s[16:17], s[0:1], 88
        s_load_dwordx2 s[20:21], s[0:1], 80
        s_lshl_b32 s36, s39, 4
        v_mov_b32 v5, 0
        v_mov_b32 v6, 1
        s_lshl_b32 s37, 1, s5
        s_waitcnt vmcnt(0) lgkmcnt(0)
        s_barrier
        s_and_b32 s17, s17, 0xffff
        s_mov_b32 s18, 256
        s_mov_b32 s19, 0x20000
        s_and_b32 s21, s21, 0xffff
        s_mov_b32 s22, %d
        s_mov_b32 s23, 0x20000
        """ % (8 * 80 * 1152 * 2))
        stamp()
        a("""
        s_cmp_eq_u32 s6, 0
        s_cbranch_scc0 L_wait
        s_mov_b64 exec, 1
        buffer_atomic_add v6, v5, s[16:19], s36 offen sc0
        s_waitcnt vmcnt(0)
        v_readfirstlane_b32 s9, v6
        s_and_b32 s10, s9, 0xffff
        s_cmp_eq_u32 s10, 15
        s_cbranch_scc0 L_poll0
        s_lshr_b32 s9, s9, 16
        s_or_b32 s37, s37, s9
        s_branch L_go
        """)
        a.label("L_poll0")
        a("s_mov_b32 s11, 0")
        a.label("L_poll")
        a("""
        s_cmp_ge_u32 s11, %d
        s_cbranch_scc1 L_giveup
        buffer_load_dword v6, v5, s[16:19], s36 offen sc1
        s_add_u32 s11, s11, 1
        s_waitcnt vmcnt(0)
        v_readfirstlane_b32 s9, v6
        s_and_b32 s9, s9, 0xffff
        s_cmp_eq_u32 s9, 16
        s_cbranch_scc1 L_go
        s_sleep 2
        s_branch L_poll
        """ % cfg.spin)
        a.label("L_giveup")
        a("""
        s_lshl_b32 s9, s37, 16
        v_mov_b32 v6, s9
        buffer_atomic_or v6, v5, s[16:19], s36 offen sc0
        s_waitcnt vmcnt(0)
        v_readfirstlane_b32 s9, v6
        s_and_b32 s9, s9, 0xffff
        s_cmp_eq_u32 s9, 16
        s_cselect_b32 s37, s37, 0
        """)
        a.label("L_go")
        a("""
        v_mov_b32 v6, s37
        ds_write_b32 v5, v6
        s_waitcnt lgkmcnt(0)
        s_mov_b64 exec, -1
        """)
        a.label("L_wait")
        a("""
        s_barrier
        ds_read_b32 v6, v5
        s_waitcnt lgkmcnt(0)
        v_readfirstlane_b32 s37, v6
        """)
        stamp()
        a.c("reduce the slices in mask s37: slice h = granules [h*360, +360); wave w takes 90 of them (64 + 26)")
        a.label("L_red")
        a("""
        s_cmp_eq_u32 s37, 0
        s_cbranch_scc1 L_fin
        s_ff1_i32_b32 s9, s37
        s_bitset0_b32 s37, s9
        s_mul_i32 s9, s9, 360
        s_mul_i32 s10, s6, 90
        s_add_u32 s9, s9, s10
        v_add_u32 v8, s9, v1
        v_add_u32 v9, 64, v8
        v_lshlrev_b32 v10, 4, v8
        v_lshlrev_b32 v11, 4, v9
        """)
        for h in range(16):
            a("s_mov_b32 s10, %d" % (h * PART))
            a("buffer_load_dwordx4 %s, v10, s[28:31], s10 offen %s" % (vr(32 + 8 * h), cfg.ld2_flag))
        a("s_mov_b64 exec, 0x3ffffff")
        for h in range(16):
            a("s_mov_b32 s10, %d" % (h * PART))
            a("buffer_load_dwordx4 %s, v11, s[28:31], s10 offen %s" % (vr(36 + 8 * h), cfg.ld2_flag))
        a("s_mov_b64 exec, -1")
        a("""
        s_and_b32 s10, s39, 7
        s_mul_i32 s10, s10, %d
        s_lshr_b32 s11, s39, 3
        s_mul_i32 s11, s11, 1152
        s_add_u32 s10, s10, s11
        """ % (80 * 2304))
        for q, o in ((8, 14), (9, 16)):
            a("""
            v_mul_u32_u24 v18, 52429, v%d
            v_lshrrev_b32 v18, 23, v18
            v_mul_u32_u24 v19, 160, v18
            v_sub_u32 v19, v%d, v19
            v_lshlrev_b32 v18, 5, v18
            v_cmp_gt_u32 vcc, 128, v19
            v_and_b32 v20, 63, v19
            v_lshrrev_b32 v21, 6, v19
            v_lshlrev_b32 v21, 5, v21
            v_lshlrev_b32 v22, 1, v20
            v_cndmask_b32 v20, v22, v20, vcc
            v_and_b32 v22, 15, v20
            v_add_u32 v21, v21, v22
            v_lshrrev_b32 v20, 4, v20
            v_lshl_add_u32 v18, v20, 3, v18
            v_mul_u32_u24 v21, 2304, v21
            v_add3_u32 v%d, v18, v21, s10
            v_mov_b32 v22, 2304
            v_mov_b32 v20, %d
            v_cndmask_b32 v22, v22, v20, vcc
            v_add_u32 v%d, v%d, v22
            """ % (q, q, o, 16 * 2304, o + 1, o))
        ACC = 160
        for part in range(2):
            for h in range(16):
                a("s_waitcnt vmcnt(%d)" % ((31 - h) if part == 0 else (15 - h + 2)))
                for d in range(4 * part, 4 * part + 4):
                    r = 32 + 8 * h + d
                    if h == 0:
                        a("v_lshlrev_b32 v%d, 16, v%d" % (ACC + 2 * d, r))
                        a("v_and_b32 v%d, 0xffff0000, v%d" % (ACC + 1 + 2 * d, r))
                    else:
                        t = 18 + 2 * (d & 1)
                        a("v_lshlrev_b32 v%d, 16, v%d" % (t, r))
                        a("v_and_b32 v%d, 0xffff0000, v%d" % (t + 1, r))
                        a("v_pk_add_f32 %s, %s, %s" % (vr(ACC + 2 * d, 2), vr(ACC + 2 * d, 2), vr(t, 2)))
            for d in range(4 * part, 4 * part + 4):
                a("v_cvt_pk_bf16_f32 v%d, v%d, v%d" % (176 + d, ACC + 2 * d, ACC + 1 + 2 * d))
            if part == 1: a("s_mov_b64 exec, 0x3ffffff")
            for k in range(2 * part, 2 * part + 2):
                a("buffer_store_dwordx2 %s, v%d, s[20:23], 0 offen" % (vr(176 + 2 * k, 2), 14 + k))
        a("s_mov_b64 exec, -1")
        a("s_waitcnt vmcnt(0)")
        a("s_branch L_red")
        a.label("L_fin")
        stamp()
    if cfg.stamps and cfg.dbgtime:
        a("s_load_dwordx2 s[16:17], s[0:1], 88")
        a("s_waitcnt lgkmcnt(0)")
        a("s_and_b32 s17, s17, 0xffff")
        a("s_mov_b32 s18, 256")
        a("s_mov_b32 s19, 0x20000")
        a("v_mov_b32 v5, 0")
        a("v_cmp_eq_u32 vcc, 0, v0")
        a("s_and_saveexec_b64 s[10:11], vcc")
        a("s_cbranch_execz L_end")
        a("s_not_b32 s9, s64")
        a("v_mov_b32 v6, s9")
        a("buffer_atomic_umax v6, v5, s[16:19], 0 offen offset:4")
        words = [2, 3, 5, 6, 7, 9, 10, 11, 13, 14, 15]
        sel = [1, 3, 5, 7, 8, 9, 12, 13, 14, 15, 0]
        for wd, k in zip(words, sel):
            k = min(k, nst[0] - 1)
            a("v_mov_b32 v%d, s%d" % (8 + wd, 64 + 2 * k))
            a("buffer_atomic_umax v%d, v5, s[16:19], 0 offen offset:%d" % (8 + wd, wd * 4))
    elif cfg.stamps:
        a("s_mov_b32 s44, s46")
        a("s_mov_b32 s45, s47")
        a("s_mov_b32 s46, 0x10000000")
        a("s_mov_b32 s47, 0x20000")
        a("s_mul_i32 s9, s2, %d" % (NSTAMP * 8))
        a("s_add_u32 s9, s9, %d" % STAMPOFF)
        a("v_mov_b32 v4, s9")
        a("v_cmp_eq_u32 vcc, 0, v0")
        a("s_and_saveexec_b64 s[10:11], vcc")
        a("s_cbranch_execz L_end")
        assert nst[0] <= 16, nst[0]
        for i in range(NSTAMP):
            k = min(i, nst[0] - 1)
            a("v_mov_b32 v6, s%d" % (64 + 2 * k))
            a("v_mov_b32 v7, s%d" % (65 + 2 * k))
            a("buffer_store_dwordx2 v[6:7], v4, s[44:47], 0 offen offset:%d" % (i * 8))
    a.label("L_end")
    a("s_endpgm")
    main_end = len(a.lines)
    for n, rt in chk_sites:
        a.label("L_slow%d" % n)
        a("s_call_b64 s[60:61], L_fix%d" % rt)
        a("s_branch L_back%d" % n)
    for rt in range(5):
        a.label("L_fix%d" % rt)
        S = V_S + rt * 8
        a("s_nop 7")
        a("v_max3_f32 v20, v%d, v%d, v%d" % (S, S + 1, S + 2))
        a("v_max3_f32 v20, v20, v%d, v%d" % (S + 3, S + 4))
        a("v_max3_f32 v20, v20, v%d, v%d" % (S + 5, S + 6))
        a("v_max_f32 v20, v20, v%d" % (S + 7))
        a("v_mov_b32 v21, v20")
        a("s_nop 1")
        a("v_permlane32_swap_b32 v20, v21")
        a("v_max_f32 v20, v20, v21")
        a("v_mov_b32 v21, v20")
        a("s_nop 1")
        a("v_permlane16_swap_b32 v20, v21")
        a("v_max_f32 v20, v20, v21")
        a("v_add_f32 v20, 0x%08x, v20" % f32bits(cfg.BIAS))
        a("v_max_f32 v20, 0, v20")
        for r in range(4):
            a("v_sub_f32 v%d, v%d, v20" % (V_NM + rt * 4 + r, V_NM + rt * 4 + r))
        for t in range(8):
            a("v_sub_f32 v%d, v%d, v20" % (V_E + t, S + t))
        for t in range(8):
            a("v_exp_f32 v%d, v%d" % (V_E + t, V_E + t))
        a("v_exp_f32 v21, -v20")
        for t in range(4):
            a("v_cvt_pk_bf16_f32 v%d, v%d, v%d" % (V_P + rt * 4 + t, V_E + 2 * t, V_E + 2 * t + 1))
        regs_v = [V_O + (i * 5 + rt) * 4 + r for i in range(4) for r in range(4)]
        regs_a = [A_O + (i * 5 + rt) * 4 + r for i in range(4) for r in range(4)] + [A_L + rt * 4 + r for r in range(4)]
        for r in regs_v: a("v_mul_f32 v%d, v%d, v21" % (r, r))
        for k in range(0, 20, 4):
            for q in range(4): a("v_accvgpr_read_b32 v%d, a%d" % (V_E + q, regs_a[k + q]))
            for q in range(4): a("v_mul_f32 v%d, v%d, v21" % (V_E + q, V_E + q))
            for q in range(4): a("v_accvgpr_write_b32 a%d, v%d" % (regs_a[k + q], V_E + q))
        a("s_nop 1")
        a("s_setpc_b64 s[60:61]")
    a.label("L_code_end")
    L = a.lines
    i_last = max(i for i, l in enumerate(L) if l.strip() == "s_cbranch_scc1 L_last")
    probs = hazard.check(L[:loop_end] + L[loop_start:i_last + 1] + L[loop_end:main_end], "main") + hazard.check(L[main_end:], "ool")
    for p in probs: print("HAZARD", p)
    return a.text()

from gen import gen_reduce

def build(cfg):
    if cfg.fuse:
        k1 = dict(name=NAME + "_kernel", grid=256, block=256, lds=160 * 1024, body=gen_main(cfg, NAME + "_kernel"), vgpr=512, sgpr=96, accum=256)
        return build_file([k1])
    k1 = dict(name="gqa_main_kernel", grid=256, block=256, lds=160 * 1024, body=gen_main(cfg, "gqa_main_kernel"), vgpr=512, sgpr=96, accum=256)
    k2 = dict(name="gqa_reduce_kernel", grid=480, block=192, lds=0, body=gen_reduce(cfg), vgpr=80, sgpr=24, accum=80)
    return build_file([k1, k2])

if __name__ == "__main__":
    cfg = Cfg()
    out = sys.argv[1] if len(sys.argv) > 1 else "k.s"
    for kv in sys.argv[2:]:
        k, v = kv.split("=")
        old = getattr(cfg, k)
        setattr(cfg, k, (v == "1") if isinstance(old, bool) else type(old)(v))
    open(out, "w").write(build(cfg))
```
